```python
import torch

def _softmax(x, axis=-1):
    return torch.softmax(x, dim=axis)
def _gelu(x):
    return torch.nn.functional.gelu(x, approximate="tanh")
def _silu(x):
    return torch.nn.functional.silu(x)
def _sigmoid(x):
    return torch.sigmoid(x)
def _layernorm(x, axis=-1, eps=1e-5):
    m = x.mean(dim=axis, keepdim=True)
    v = x.var(dim=axis, keepdim=True, unbiased=False)
    return (x - m) / torch.sqrt(v + eps)
def _scatter_add(tgt, idx, src, axis=0):
    return tgt.clone().index_add_(axis, idx, src)
def _segment_sum(src, seg, n):
    out = torch.zeros((n,) + src.shape[1:], dtype=src.dtype)
    return out.index_add_(0, seg, src)
def _pad(x, pw):
    flat = tuple(v for pair in reversed(pw) for v in pair)
    return torch.nn.functional.pad(x, flat)

kernel_name = 'standalone__paged_block_table_kv_pagedattention__sampling'

def setup_inputs():

    _w = (lambda a: (lambda t: t.to(torch.bfloat16) if t.is_floating_point() else t)(torch.as_tensor(a)))
    B, Hq, Hkv, Sq, Skv, D = 8, 32, 8, 8, 2048, 128
    bs = 16
    nbps = max(1, Skv // bs)
    num_phys = B * nbps + 4
    bt = torch.randperm(num_phys)[: B * nbps].reshape(B, nbps).to(torch.int64)
    cl = (nbps * bs - (torch.arange(1, B + 1, dtype=torch.int64) * 2654435761) % max(1, nbps * bs // 2)).to(torch.int64)
    return {
        "q": _w((lambda *s: torch.randn(*s, dtype=torch.bfloat16) * 0.8)(B, Hq, Sq, D)),
        "k_cache": _w((lambda *s: torch.randn(*s, dtype=torch.bfloat16) * 0.8)(num_phys, bs, Hkv, D)),
        "v_cache": _w((lambda *s: torch.randn(*s, dtype=torch.bfloat16) * 0.05)(num_phys, bs, Hkv, D)),
        "block_table": _w(bt),
        "context_lens": _w(cl),
    }

def reference(q, k_cache, v_cache, block_table, context_lens):
    B, Hq, Sq, D = q.shape
    bs = k_cache.shape[1]
    Hkv = k_cache.shape[2]
    nbps = block_table.shape[1]
    Skv = nbps * bs
    bt = block_table.reshape(-1)
    k = (lambda x, *d: x.permute(*d))(k_cache[bt].reshape(B, Skv, Hkv, D), 0, 2, 1, 3)
    v = (lambda x, *d: x.permute(*d))(v_cache[bt].reshape(B, Skv, Hkv, D), 0, 2, 1, 3)
    g = Hq // Hkv
    qg = q.reshape(B, Hkv, g, Sq, D)
    scores = torch.einsum("bhgqd,bhkd->bhgqk", qg, k) * (D ** -0.5)
    pos = torch.arange(Skv)
    msk = pos[None, :] < context_lens[:, None]
    scores = torch.where(msk[:, None, None, None, :], scores, -1e9)
    p = _softmax(scores, axis=-1)
    out = torch.einsum("bhgqk,bhkd->bhgqd", p, v)
    return out.reshape(B, Hq, Sq, D)
```

```python
import sys
NAME = "standalone__paged_block_table_kv_pagedattention__sampling"

XB = 131072
X_TAB = XB
X_Q = XB + 4096
X_MAX = XB + 12288
LDS_BYTES = 163840
WS_EPOCH = 0
WS_ML = 4096
WS_O = 1 << 20
WS_USED = 8 << 20
STAMP_OFF = 128 << 20
KV_BYTES = 1028 * 16 * 8 * 128 * 2

class Gen:
    def __init__(self, stamps=False, nt=True, dump=None, sleep_poll=0):
        self.L = []
        self.stamps = stamps
        self.ntf = " nt" if nt else ""
        self.dump = dump
        self.nst = 0
        self.uid = 0
        self.sleep_poll = sleep_poll
    def A(self, s): self.L.append(s)
    def I(self, s): self.L.append("  " + s)
    def lab(self, s): self.L.append(s + ":")
    def nop(self, n):
        while n > 0:
            k = min(n, 16)
            self.I(f"s_nop {k-1}")
            n -= k
    def newlab(self, p):
        self.uid += 1
        return f"L_{p}_{self.uid}"
    def stamp(self, k):
        if self.stamps:
            self.I(f"s_memrealtime s[{STB+2*k}:{STB+2*k+1}]")
            self.nst = max(self.nst, k + 1)

sQ, sK, sV, sBT, sCLp, sOUT, sWS = 4, 6, 8, 10, 12, 14, 16
sW, sH, sSlot, sB, sJ, sN = 18, 19, 20, 21, 22, 23
SK, SV, SQ, ST, SO, SWS = 24, 28, 32, 36, 40, 44
sNB, sCL, sCNT, sNV, sE, sCs, sG0 = 48, 49, 50, 51, 52, 53, 54
sBlk = 55
sH256 = 59
sP = 60
sT0, sT1 = 64, 65
sNST = 66
sNSTEP = 67
sGB = 68
t0, t1, t2, t3, t4, t5, t6, t7 = 70, 71, 72, 73, 74, 75, 76, 77
STB = 80
vLane, vI, vG = 0, 1, 2
vKD = 4
vVD = 8
vKA = 12
vPW = 16
vPR = 17
vVR = 21
vNEG = 23
vG4 = 24
vMC = 25
vL16 = 27
vT = 28
vQF = 32
vKF = 64
vS = 80
vPF = 112
vVF = 32
vO = 48
vLs = 56
vONE = 64
vX = 240

def sr(a, n=2): return f"s[{a}:{a+n-1}]"
def vr(a, n): return f"v[{a}:{a+n-1}]"

def gen(stamps=False, nt=True, dump=None, sleep_poll=0):
    g = Gen(stamps, nt, dump, sleep_poll)
    A, I, lab, nop = g.A, g.I, g.lab, g.nop
    ntf = g.ntf
    A(f"; @launch grid=(256,1,1) block=(512,1,1) lds={LDS_BYTES}")
    A('.amdgcn_target "amdgcn-amd-amdhsa--gfx950"')
    A(".text")
    A(f".globl {NAME}_kernel")
    A(".p2align 8")
    A(f".type {NAME}_kernel,@function")
    A(f"{NAME}_kernel:")
    I("s_cmp_ge_u32 s2, 256")
    I("s_cbranch_scc1 L_end")
    g.stamp(0)
    if g.stamps: I(f"s_mov_b64 s[{STB+16}:{STB+17}], 0")
    I(f"s_load_dwordx8 s[4:11], s[0:1], 0")
    I(f"s_load_dwordx4 s[12:15], s[0:1], 32")
    I(f"s_load_dwordx2 s[16:17], s[0:1], 56")
    I(f"v_lshrrev_b32 v{vT}, 6, v0")
    I(f"v_and_b32 v{vLane}, 63, v0")
    I(f"s_and_b32 s{sH}, s2, 7")
    I(f"v_readfirstlane_b32 s{sW}, v{vT}")
    I(f"s_lshr_b32 s{sSlot}, s2, 3")
    I(f"v_and_b32 v{vI}, 15, v{vLane}")
    I(f"v_lshrrev_b32 v{vG}, 4, v{vLane}")
    I(f"v_lshlrev_b32 v{vL16}, 4, v{vLane}")
    vR, vAR = vX, vX + 4
    I(f"v_lshlrev_b32 v{vG4}, 2, v{vG}")
    I(f"v_add_u32 v{vT}, 17, v{vG4}")
    I(f"v_cvt_f32_u32 v{vT}, v{vT}")
    I(f"v_add_f32 v{vT+1}, 1.0, v{vT}")
    I(f"v_add_f32 v{vT+2}, 2.0, v{vT}")
    I(f"v_add_f32 v{vT+3}, 1.0, v{vT+2}")
    for f in range(4):
        I(f"v_rcp_f32 v{vR+f}, v{vT+f}")
    vOC, vOE, vM8 = vX + 8, vX + 9, vX + 10
    I(f"v_and_b32 v{vOC}, 7, v{vLane}")
    I(f"v_lshlrev_b32 v{vOC}, 2, v{vOC}")
    I(f"s_lshl_b32 s{t0}, s{sH}, 5")
    I(f"v_add_u32 v{vOE}, s{t0}, v{vOC}")
    I(f"v_cmp_gt_u32 vcc, 8, v{vI}")
    for f in range(4):
        I(f"v_fma_f32 v{vAR+f}, v{vR+f}, -0.5, 1.0")
    I(f"v_cndmask_b32 v{vM8}, 0, -1, vcc")
    vTO = vX + 11
    I(f"s_lshl_b32 s{t1}, s{sW}, 10")
    I(f"v_add_u32 v{vTO}, s{t1}, v{vL16}")
    I(f"s_add_u32 s{t1}, s{t1}, {X_TAB}")
    I(f"s_mov_b32 m0, s{t1}")
    I(f"s_lshl_b32 s{sH256}, s{sH}, 8")
    I(f"s_mov_b32 s{ST+2}, 4096")
    I(f"s_mov_b32 s{ST+3}, 0x20000")
    I("s_waitcnt lgkmcnt(0)")
    g.stamp(1)
    vCL, vE = vX + 12, vX + 13
    I(f"global_load_dword v{vCL}, v{vOC}, {sr(sCLp)}")
    I(f"global_load_dword v{vE}, v{vOE}, {sr(sWS)} sc1")
    I(f"s_mov_b32 s{ST}, s{sBT}")
    I(f"s_and_b32 s{ST+1}, s{sBT+1}, 0xffff")
    I(f"s_cmp_ge_u32 s{sW}, 4")
    I(f"s_cbranch_scc1 L_notab")
    I(f"buffer_load_dwordx4 v{vTO}, {sr(ST,4)}, 0 offen lds")
    lab("L_notab")
    for (S, p, nbytes) in ((SK, sK, KV_BYTES), (SV, sV, KV_BYTES), (SQ, sQ, 524288), (SO, sOUT, 524288), (SWS, sWS, WS_USED)):
        I(f"s_mov_b32 s{S}, s{p}")
        I(f"s_and_b32 s{S+1}, s{p+1}, 0xffff")
        I(f"s_mov_b32 s{S+2}, {nbytes}")
        I(f"s_mov_b32 s{S+3}, 0x20000")
    for jj in range(4):
        I(f"v_add_u32 v{vT}, {4*jj}, v{vG}")
        I(f"v_xor_b32 v{vT+1}, v{vT}, v{vI}")
        I(f"v_lshlrev_b32 v{vT+1}, 4, v{vT+1}")
        I(f"v_lshl_add_u32 v{vT+1}, v{vT}, 11, v{vT+1}")
        if jj: I(f"v_subrev_u32 v{vKD+jj}, {jj*1024}, v{vT+1}")
        else:  I(f"v_mov_b32 v{vKD}, v{vT+1}")
    for jj in range(4):
        I(f"v_add_u32 v{vT}, {4*jj}, v{vG}")
        I(f"v_lshlrev_b32 v{vT+1}, 1, v{vG}")
        if jj >> 1: I(f"v_or_b32 v{vT+1}, 8, v{vT+1}")
        I(f"v_xor_b32 v{vT+1}, v{vT+1}, v{vI}")
        I(f"v_lshlrev_b32 v{vT+1}, 4, v{vT+1}")
        I(f"v_lshl_add_u32 v{vT+1}, v{vT}, 11, v{vT+1}")
        if jj: I(f"v_subrev_u32 v{vVD+jj}, {jj*1024}, v{vT+1}")
        else:  I(f"v_mov_b32 v{vVD}, v{vT+1}")
    I(f"s_lshl_b32 s{t0}, s{sW}, 12")
    for s in range(4):
        I(f"v_add_u32 v{vT}, {4*s}, v{vG}")
        I(f"v_xor_b32 v{vT}, v{vT}, v{vI}")
        I(f"v_lshlrev_b32 v{vT}, 4, v{vT}")
        I(f"v_lshl_add_u32 v{vT}, v{vI}, 8, v{vT}")
        I(f"v_add_u32 v{vKA+s}, s{t0}, v{vT}")
    vQD = vX + 14
    I(f"s_lshl_b32 s{t1}, s{sW}, 2")
    I(f"v_add_u32 v{vT}, s{t1}, v{vG}")
    I(f"v_and_b32 v{vT+1}, 15, v{vT}")
    I(f"v_xor_b32 v{vT+1}, v{vT+1}, v{vI}")
    I(f"v_lshlrev_b32 v{vT+1}, 4, v{vT+1}")
    I(f"v_lshl_add_u32 v{vQD}, v{vT}, 8, v{vT+1}")
    I(f"v_mov_b32 v{vNEG}, 0xff800000")
    I(f"v_mov_b32 v{vT+3}, 0x800")
    vTINY = vKF
    I(f"v_mov_b32 v{vTINY}, 0x0da24260")
    I("s_waitcnt vmcnt(0)")
    g.stamp(2)
    vNB, vCS, vNP, vPP = vX + 15, vT, vT + 1, vT + 2
    import struct, math
    cbits = struct.unpack("<I", struct.pack("<f", (128 ** -0.5) * math.log2(math.e)))[0]
    I(f"v_cmp_gt_i32 vcc, 1, v{vCL}")
    I(f"v_min_i32 v{vCL}, 0x800, v{vCL}")
    I(f"v_mov_b32 v{vCS}, 0x{cbits:08x}")
    I(f"v_cndmask_b32 v{vCL}, v{vCL}, v{vT+3}, vcc")
    I(f"v_cndmask_b32 v{vCS}, v{vCS}, v{vTINY}, vcc")
    I(f"v_add_u32 v{vNB}, 15, v{vCL}")
    I(f"v_lshrrev_b32 v{vNB}, 4, v{vNB}")
    I(f"v_and_b32 v{vNB}, v{vNB}, v{vM8}")
    I(f"v_cvt_f32_u32 v{vT+3}, v{vNB}")
    for f in range(4):
        I(f"v_fma_f32 v{vR+f}, v{vT+3}, v{vR+f}, v{vAR+f}")
    for f in range(4):
        I(f"v_cvt_u32_f32 v{vR+f}, v{vR+f}")
    I(f"v_lshl_or_b32 v{vR}, v{vR+1}, 8, v{vR}")
    I(f"v_lshl_or_b32 v{vR+2}, v{vR+3}, 8, v{vR+2}")
    I(f"v_lshl_or_b32 v{vNP}, v{vR+2}, 16, v{vR}")
    nop(2)
    I(f"v_add_u32_dpp v{vPP}, v{vNP}, v{vNP} row_shr:1 row_mask:0xf bank_mask:0xf bound_ctrl:0")
    nop(2)
    I(f"v_add_u32_dpp v{vPP}, v{vPP}, v{vPP} row_shr:2 row_mask:0xf bank_mask:0xf bound_ctrl:0")
    nop(2)
    I(f"v_add_u32_dpp v{vPP}, v{vPP}, v{vPP} row_shr:4 row_mask:0xf bank_mask:0xf bound_ctrl:0")
    I(f"v_add_u32 v{vR}, 0x5f5f5f5f, v{vPP}")
    I(f"v_and_b32 v{vR}, 0x80808080, v{vR}")
    I(f"v_bcnt_u32_b32 v{vR}, v{vR}, 0")
    nop(1)
    I(f"v_readlane_b32 s{t0}, v{vR}, 7")
    I(f"v_readlane_b32 s{t1}, v{vR}, 23")
    I(f"v_readlane_b32 s{t2}, v{vR}, 39")
    I(f"v_readlane_b32 s{t3}, v{vR}, 55")
    I(f"s_add_u32 s{t0}, s{t0}, s{t1}")
    I(f"s_add_u32 s{t2}, s{t2}, s{t3}")
    I(f"s_add_u32 s{t0}, s{t0}, s{t2}")
    I(f"s_and_b32 s{t1}, s{t0}, 3")
    I(f"s_lshl_b32 s{t1}, s{t1}, 3")
    I(f"s_lshr_b32 s{t2}, s{t0}, 2")
    I(f"s_lshl_b32 s{t2}, s{t2}, 4")
    I(f"v_bfe_u32 v{vPP}, v{vPP}, s{t1}, 8")
    I(f"v_bfe_u32 v{vNP}, v{vNP}, s{t1}, 8")
    I(f"v_cmp_lt_u32 vcc, s{sSlot}, v{vPP}")
    nop(2)
    I(f"s_lshr_b64 {sr(t4)}, vcc, s{t2}")
    I(f"s_and_b32 s{t4}, s{t4}, 0xff")
    I(f"s_cbranch_scc0 L_end")
    I(f"s_ff1_i32_b32 s{sB}, s{t4}")
    I(f"s_add_u32 s{t2}, s{t2}, s{sB}")
    I(f"v_readlane_b32 s{sN}, v{vNP}, s{t2}")
    I(f"v_readlane_b32 s{sG0}, v{vPP}, s{t2}")
    I(f"v_readlane_b32 s{sNB}, v{vNB}, s{t2}")
    I(f"v_readlane_b32 s{sCL}, v{vCL}, s{t2}")
    I(f"v_readlane_b32 s{sE}, v{vE}, s{t2}")
    I(f"v_readlane_b32 s{sCs}, v{vCS}, s{t2}")
    I(f"s_sub_u32 s{sG0}, s{sG0}, s{sN}")
    I(f"s_sub_u32 s{sJ}, s{sSlot}, s{sG0}")
    I(f"s_lshl_b32 s{t0}, s{sB}, 9")
    I(f"s_add_u32 s{t0}, s{t0}, {X_TAB}")
    I(f"v_mul_u32_u24 v{vT}, s{sN}, v{vLane}")
    I(f"v_add_u32 v{vT}, s{sJ}, v{vT}")
    I(f"v_cmp_gt_u32 vcc, s{sNB}, v{vT}")
    I(f"v_min_u32 v{vT}, 127, v{vT}")
    I(f"v_lshl_add_u32 v{vT}, v{vT}, 2, s{t0}")
    I("s_barrier")
    I(f"ds_read_b32 v{vT+1}, v{vT}")
    I(f"s_bcnt1_i32_b32 s{sCNT}, vcc_lo")
    I(f"s_sub_u32 s{sNV}, s{sCNT}, s{sW}")
    I(f"s_add_u32 s{sNV}, s{sNV}, 7")
    I(f"s_ashr_i32 s{sNV}, s{sNV}, 3")
    I(f"s_add_u32 s{sNST}, s{sCNT}, 7")
    I(f"s_lshr_b32 s{sNST}, s{sNST}, 3")
    I(f"s_add_u32 s{sNSTEP}, s{sCNT}, 1")
    I(f"s_lshr_b32 s{sNSTEP}, s{sNSTEP}, 1")
    I(f"s_lshl_b32 s{t1}, s{sB}, 16")
    I(f"s_lshl_b32 s{t2}, s{sH}, 13")
    I(f"s_add_u32 s{t1}, s{t1}, s{t2}")
    I(f"s_lshl_b32 s{t2}, s{sW}, 10")
    I(f"s_add_u32 s{t2}, s{t2}, {X_Q}")
    I(f"s_mov_b32 m0, s{t2}")
    I(f"s_mul_i32 s{sGB}, s{sN}, s{sW}")
    I(f"s_add_u32 s{sGB}, s{sGB}, s{sJ}")
    I(f"buffer_load_dwordx4 v{vQD}, {sr(SQ,4)}, s{t1} offen lds")
    I(f"s_add_u32 s{t3}, s{sW}, 8")
    I(f"s_add_u32 s{t4}, s{sW}, 16")
    I(f"s_add_u32 s{t5}, s{sW}, 24")
    I("s_waitcnt lgkmcnt(0)")
    I(f"v_lshl_add_u32 v{vT+1}, v{vT+1}, 15, s{sH256}")
    I(f"s_lshl_b32 s{t6}, s{sW}, 12")
    I(f"s_mov_b32 m0, s{t6}")
    I(f"v_readlane_b32 s{sBlk}, v{vT+1}, s{sW}")
    I(f"v_readlane_b32 s{sBlk+1}, v{vT+1}, s{t3}")
    I(f"v_readlane_b32 s{sBlk+2}, v{vT+1}, s{t4}")
    I(f"v_readlane_b32 s{sBlk+3}, v{vT+1}, s{t5}")
    g.stamp(3)
    nop(4)
    def dma_block(voff, srd, k):
        for jj in range(4):
            I(f"buffer_load_dwordx4 v{voff+jj}, {sr(srd,4)}, s{sBlk+k} offen offset:{jj*1024}{ntf} lds")
    def set_m0(k):
        if k: I(f"s_add_u32 s{t0}, s{t6}, {k*32768}")
        I(f"s_mov_b32 m0, s{t0 if k else t6}")
        I("s_nop 0")
    for n in (4, 3, 2, 1):
        I(f"s_cmp_ge_i32 s{sNV}, {n}")
        I(f"s_cbranch_scc1 L_k{n}")
    I("s_branch L_k0")
    def q_frags():
        I(f"s_sub_u32 s{t0}, {X_Q}, s{t6}")
        for s in range(4):
            I(f"v_add_u32 v{vT+s}, s{t0}, v{vKA+s}")
        I("s_barrier")
        for hq in range(2):
            for s in range(4):
                I(f"ds_read_b128 {vr(vQF+16*hq+4*s,4)}, v{vT+s} offset:{hq*4096}")
    for n in (4, 3, 2, 1, 0):
        lab(f"L_k{n}")
        for k in range(n):
            if k: set_m0(k)
            dma_block(vKD, SK, k)
        I(f"s_waitcnt vmcnt({4*n})")
        q_frags()
        for k in range(n):
            if k == 2:
                for s in range(4): I(f"v_add_u32 v{vKA+s}, 0x10000, v{vKA+s}")
            I(f"s_waitcnt vmcnt({4*(n-1)})")
            for s in range(4):
                I(f"ds_read_b128 {vr(vKF+4*s,4)}, v{vKA+s} offset:{(k&1)*32768}")
            set_m0(k)
            I("s_waitcnt lgkmcnt(0)")
            dma_block(vVD, SV, k)
            for hq in range(2):
                for s in range(4):
                    c = "0" if s == 0 else vr(vS+8*k+4*hq, 4)
                    I(f"v_mfma_f32_16x16x32_bf16 {vr(vS+8*k+4*hq,4)}, {vr(vKF+4*s,4)}, {vr(vQF+16*hq+4*s,4)}, {c}")
        if n == 0: I("s_waitcnt lgkmcnt(0)")
        if n: I("s_branch L_kdone")
    lab("L_kdone")
    I(f"s_bitcmp1_b32 s{sCNT}, 0")
    I(f"s_cbranch_scc0 L_nozero")
    I(f"s_and_b32 s{t0}, s{sCNT}, 7")
    I(f"s_cmp_lg_u32 s{t0}, s{sW}")
    I(f"s_cbranch_scc1 L_nozero")
    I(f"s_lshl_b32 s{t0}, s{sCNT}, 12")
    I(f"v_add_u32 v{vT}, s{t0}, v{vL16}")
    for x in range(4): I(f"v_mov_b32 v{vX+x}, 0")
    for x in range(4): I(f"ds_write_b128 v{vT}, {vr(vX,4)} offset:{x*1024}")
    lab("L_nozero")
    I(f"s_lshl_b32 s{t0}, s{sW}, 1")
    I(f"v_lshrrev_b32 v{vT}, 1, v{vG}")
    I(f"v_add_u32 v{vT}, s{t0}, v{vT}")
    I(f"v_xor_b32 v{vT}, v{vT}, v{vI}")
    I(f"v_lshlrev_b32 v{vT}, 4, v{vT}")
    I(f"v_lshl_add_u32 v{vT}, v{vI}, 10, v{vT}")
    I(f"v_and_b32 v{vT+1}, 1, v{vG}")
    I(f"v_lshl_add_u32 v{vT}, v{vT+1}, 3, v{vT}")
    I(f"v_add_u32 v{vPW}, {XB}, v{vT}")
    for u in range(4):
        I(f"v_add_u32 v{vT}, {4*u}, v{vG}")
        I(f"v_xor_b32 v{vT}, v{vT}, v{vI}")
        I(f"v_lshlrev_b32 v{vT}, 4, v{vT}")
        I(f"v_lshl_add_u32 v{vT}, v{vI}, 10, v{vT}")
        I(f"v_add_u32 v{vPR+u}, {XB}, v{vT}")
    I(f"v_lshrrev_b32 v{vT}, 2, v{vI}")
    I(f"v_and_b32 v{vT+1}, 1, v{vG}")
    I(f"v_lshl_add_u32 v{vT+2}, v{vT+1}, 2, v{vT}")
    I(f"v_lshl_add_u32 v{vT+3}, v{vT+1}, 3, v{vT}")
    I(f"v_lshlrev_b32 v{vT+2}, 1, v{vT+2}")
    I(f"v_bfe_u32 v{vT}, v{vI}, 1, 1")
    I(f"s_lshl_b32 s{t0}, s{sW}, 1")
    I(f"v_add_u32 v{vT}, s{t0}, v{vT}")
    I(f"v_xor_b32 v{vT}, v{vT}, v{vT+2}")
    I(f"v_lshlrev_b32 v{vT}, 4, v{vT}")
    I(f"v_lshl_add_u32 v{vT}, v{vT+3}, 8, v{vT}")
    I(f"v_and_b32 v{vT+1}, 1, v{vI}")
    I(f"v_lshl_add_u32 v{vT}, v{vT+1}, 3, v{vT}")
    I(f"v_lshrrev_b32 v{vT+1}, 1, v{vG}")
    I(f"v_lshl_add_u32 v{vVR}, v{vT+1}, 12, v{vT}")
    I(f"v_add_u32 v{vVR+1}, 0x10000, v{vVR}")
    for k in range(4):
        l = g.newlab("nomask")
        I(f"s_mul_i32 s{t0}, s{sN}, {8*k}")
        I(f"s_add_u32 s{t0}, s{t0}, s{sGB}")
        I(f"s_lshl_b32 s{t0}, s{t0}, 4")
        I(f"s_sub_i32 s{t0}, s{sCL}, s{t0}")
        I(f"s_cmp_ge_i32 s{t0}, 16")
        I(f"s_cbranch_scc1 {l}")
        nop(8)
        for r in range(4):
            I(f"s_sub_i32 s{t1}, s{t0}, {r}")
            I(f"v_cmp_le_i32 vcc, s{t1}, v{vG4}")
            nop(2)
            for hq in range(2):
                x = vS + 8*k + 4*hq + r
                I(f"v_cndmask_b32 v{x}, v{x}, v{vNEG}, vcc")
        lab(l)
    nop(8)
    for hq in range(2):
        xs = [vS + 8*k + 4*hq + r for k in range(4) for r in range(4)]
        d = vX + hq
        I(f"v_max3_f32 v{d}, v{xs[0]}, v{xs[1]}, v{xs[2]}")
        rest = xs[3:]
        while len(rest) >= 2:
            I(f"v_max3_f32 v{d}, v{d}, v{rest[0]}, v{rest[1]}"); rest = rest[2:]
        if rest: I(f"v_max_f32 v{d}, v{d}, v{rest[0]}")
    for perm in ("v_permlane32_swap_b32", "v_permlane16_swap_b32"):
        I(f"v_mov_b32 v{vX+2}, v{vX}")
        I(f"v_mov_b32 v{vX+3}, v{vX+1}")
        nop(2)
        I(f"{perm} v{vX}, v{vX+2}")
        I(f"{perm} v{vX+1}, v{vX+3}")
        nop(1)
        I(f"v_max_f32 v{vX}, v{vX}, v{vX+2}")
        I(f"v_max_f32 v{vX+1}, v{vX+1}, v{vX+3}")
    I(f"s_lshl_b32 s{t0}, s{sW}, 2")
    I(f"s_add_u32 s{t0}, s{t0}, {X_MAX}")
    I(f"v_lshl_add_u32 v{vT}, v{vI}, 5, s{t0}")
    I(f"ds_write_b32 v{vT}, v{vX}")
    I(f"ds_write_b32 v{vT}, v{vX+1} offset:512")
    I(f"v_lshlrev_b32 v{vT+1}, 5, v{vI}")
    I(f"v_add_u32 v{vT+1}, {X_MAX}, v{vT+1}")
    I("s_waitcnt lgkmcnt(0)")
    I("s_barrier")
    g.stamp(4)
    for hq in range(2):
        I(f"ds_read_b128 {vr(vX+8*hq,4)}, v{vT+1} offset:{hq*512}")
        I(f"ds_read_b128 {vr(vX+8*hq+4,4)}, v{vT+1} offset:{hq*512+16}")
    I("s_waitcnt lgkmcnt(0)")
    I("s_barrier")
    for hq in range(2):
        b = vX + 8*hq
        I(f"v_max3_f32 v{b}, v{b}, v{b+1}, v{b+2}")
        I(f"v_max3_f32 v{b+3}, v{b+3}, v{b+4}, v{b+5}")
        I(f"v_max3_f32 v{b}, v{b}, v{b+6}, v{b+7}")
        I(f"v_max_f32 v{b}, v{b}, v{b+3}")
        I(f"v_mul_f32 v{vMC+hq}, s{sCs}, v{b}")
    for k in range(4):
        for hq in range(2):
            b = vS + 8*k + 4*hq
            for r in range(4):
                I(f"v_fma_f32 v{b+r}, v{b+r}, s{sCs}, -v{vMC+hq}")
            for r in range(4):
                I(f"v_exp_f32 v{b+r}, v{b+r}")
            nop(1)
            I(f"v_cvt_pk_bf16_f32 v{b}, v{b}, v{b+1}")
            I(f"v_cvt_pk_bf16_f32 v{b+1}, v{b+2}, v{b+3}")
            I(f"ds_write_b64 v{vPW}, {vr(b,2)} offset:{hq*16384 + k*256}")
    for x in range(4): I(f"v_mov_b32 v{vONE+x}, 0x3f803f80")
    I("s_waitcnt lgkmcnt(0)")
    I("s_barrier")
    for s in range(4):
        if s:
            I(f"s_cmp_le_u32 s{sNST}, {s}")
            I(f"s_cbranch_scc1 L_pdone")
        for u in range(4):
            t = 4*s + u
            for hq in range(2):
                I(f"ds_read_b128 {vr(vPF+8*t+4*hq,4)}, v{vPR+u} offset:{hq*16384 + s*256}")
        I("s_waitcnt lgkmcnt(0)")
        for u in range(4):
            t = 4*s + u
            for hq in range(2):
                c = "0" if t == 0 else vr(vLs+4*hq, 4)
                I(f"v_mfma_f32_16x16x32_bf16 {vr(vLs+4*hq,4)}, {vr(vONE,4)}, {vr(vPF+8*t+4*hq,4)}, {c}")
    lab("L_pdone")
    g.stamp(5)
    for s in range(4):
        if s:
            I(f"s_cmp_le_u32 s{sNST}, {s}")
            I(f"s_cbranch_scc1 L_pvdone")
        lw = g.newlab("vw")
        I(f"s_sub_i32 s{t0}, s{sNV}, {s+1}")
        for r in (3, 2, 1):
            if r > 3 - s: continue
            l = g.newlab("vw")
            I(f"s_cmp_lt_i32 s{t0}, {r}")
            I(f"s_cbranch_scc1 {l}")
            I(f"s_waitcnt vmcnt({4*r})")
            I(f"s_branch {lw}")
            lab(l)
        I("s_waitcnt vmcnt(0)")
        lab(lw)
        I("s_barrier")
        if True:
            pass
        ldone = g.newlab("st")
        lpart = g.newlab("part")
        I(f"s_cmp_lt_u32 s{sNSTEP}, {4*s+4}")
        I(f"s_cbranch_scc1 {lpart}")
        def reads(u):
            t = 4*s + u
            base = vVR + (t >> 3)
            I(f"ds_read_b64_tr_b16 {vr(vVF+4*u,2)}, v{base} offset:{(t&7)*8192}")
            I(f"ds_read_b64_tr_b16 {vr(vVF+4*u+2,2)}, v{base} offset:{(t&7)*8192+1024}")
        def mfmas(u):
            t = 4*s + u
            for hq in range(2):
                c = "0" if t == 0 else vr(vO+4*hq, 4)
                I(f"v_mfma_f32_16x16x32_bf16 {vr(vO+4*hq,4)}, {vr(vVF+4*u,4)}, {vr(vPF+8*t+4*hq,4)}, {c}")
        for u in range(4): reads(u)
        for u in range(4):
            I(f"s_waitcnt lgkmcnt({2*(3-u)})")
            mfmas(u)
        I(f"s_branch {ldone}")
        lab(lpart)
        for u in range(3):
            if u:
                I(f"s_cmp_le_u32 s{sNSTEP}, {4*s+u}")
                I(f"s_cbranch_scc1 {ldone}")
            reads(u)
            I("s_waitcnt lgkmcnt(0)")
            mfmas(u)
        lab(ldone)
    lab("L_pvdone")
    g.stamp(6)
    I(f"s_lshl_b32 s{t0}, s{sE}, 3")
    I(f"s_or_b32 s{t0}, s{t0}, s{sB}")
    I(f"s_mul_i32 s{sT0}, s{t0}, 0x9e3779b1")
    I(f"s_add_u32 s{sT0}, s{sT0}, 0x85ebca6b")
    I(f"s_mul_i32 s{sT1}, s{t0}, 0xc2b2ae35")
    I(f"s_add_u32 s{sT1}, s{sT1}, 0x27d4eb2f")
    I(f"s_and_b32 s{sP}, s{sT0}, 0xfff")
    I(f"s_bfe_u32 s{sP+1}, s{sT0}, 0xc000c")
    I(f"s_lshr_b32 s{sP+2}, s{sT0}, 24")
    I(f"s_lshl_b32 s{t1}, s{sT1}, 8")
    I(f"s_and_b32 s{t1}, s{t1}, 0xf00")
    I(f"s_or_b32 s{sP+2}, s{sP+2}, s{t1}")
    I(f"s_bfe_u32 s{sP+3}, s{sT1}, 0xc0004")
    vOO = vT
    I(f"s_lshl_b32 s{t0}, s{sB}, 16")
    I(f"s_lshl_b32 s{t1}, s{sH}, 13")
    I(f"s_add_u32 s{t0}, s{t0}, s{t1}")
    I(f"s_lshl_b32 s{t1}, s{sW}, 5")
    I(f"s_add_u32 s{t0}, s{t0}, s{t1}")
    I(f"v_lshlrev_b32 v{vOO}, 8, v{vI}")
    I(f"v_lshl_add_u32 v{vOO}, v{vG}, 3, v{vOO}")
    I(f"v_add_u32 v{vOO}, s{t0}, v{vOO}")
    I(f"s_cmp_eq_u32 s{sN}, 1")
    I(f"s_cbranch_scc1 L_single")
    sOw0, sOw1, sMe = t2, t3, t4
    I(f"s_mul_i32 s{sOw0}, s{sW}, s{sN}")
    I(f"s_lshl_b32 s{t1}, s{sN}, 3")
    I(f"s_add_u32 s{sOw1}, s{sOw0}, s{t1}")
    I(f"s_lshr_b32 s{sOw0}, s{sOw0}, 4")
    I(f"s_lshr_b32 s{sOw1}, s{sOw1}, 4")
    I(f"s_lshl_b32 s{t5}, s2, 14")
    I(f"s_lshl_b32 s{t1}, s{sW}, 10")
    I(f"s_add_u32 s{t5}, s{t5}, s{t1}")
    I(f"s_add_u32 s{t5}, s{t5}, {WS_O}")
    I(f"v_mov_b32 v{vT+1}, 0xfffff000")
    nop(2)
    for hq, own in ((0, sOw0), (1, sOw1)):
        l = g.newlab("nopub")
        I(f"s_cmp_eq_u32 s{own}, s{sJ}")
        I(f"s_cbranch_scc1 {l}")
        for r in range(4):
            I(f"v_and_b32 v{vX+4*hq+r}, v{vO+4*hq+r}, v{vT+1}")
        for r in range(4):
            I(f"v_or_b32 v{vX+4*hq+r}, s{sP+r}, v{vX+4*hq+r}")
        I(f"buffer_store_dwordx4 {vr(vX+4*hq,4)}, v{vL16}, {sr(SWS,4)}, s{t5} offen offset:0 sc1") if hq == 0 else None
        if hq == 1:
            I(f"s_add_u32 s{t1}, s{t5}, 8192")
            I(f"buffer_store_dwordx4 {vr(vX+4,4)}, v{vL16}, {sr(SWS,4)}, s{t1} offen sc1")
        lab(l)
    I(f"s_cmp_lg_u32 s{sW}, 0")
    I(f"s_cbranch_scc1 L_noml")
    I(f"s_lshl_b32 s{t1}, s2, 9")
    I(f"s_add_u32 s{t1}, s{t1}, {WS_ML}")
    I(f"s_mov_b64 exec, 0xffff")
    for hq in range(2):
        b = vX + 8 + 4*hq
        I(f"v_mov_b32 v{b}, v{vMC+hq}")
        I(f"v_mov_b32 v{b+1}, v{vLs+4*hq}")
        I(f"v_mov_b32 v{b+2}, s{sT0}")
        I(f"v_mov_b32 v{b+3}, s{sT1}")
        I(f"buffer_store_dwordx4 {vr(b,4)}, v{vL16}, {sr(SWS,4)}, s{t1} offen offset:{hq*256} sc1")
    I(f"s_mov_b64 exec, -1")
    lab("L_noml")
    g.stamp(7)
    I(f"s_cmp_eq_u32 s{sOw0}, s{sJ}")
    I(f"s_cbranch_scc1 L_own0")
    I(f"s_cmp_eq_u32 s{sOw1}, s{sJ}")
    I(f"s_cbranch_scc0 L_fin")
    vA_O, vA_M, vA_L = vX, vX + 4, vX + 5
    for r in range(4): I(f"v_mov_b32 v{vA_O+r}, v{vO+4+r}")
    I(f"v_mov_b32 v{vA_M}, v{vMC+1}")
    I(f"v_mov_b32 v{vA_L}, v{vLs+4}")
    I(f"s_mov_b32 s{t6}, 1")
    I(f"s_branch L_gather")
    lab("L_own0")
    for r in range(4): I(f"v_mov_b32 v{vA_O+r}, v{vO+r}")
    I(f"v_mov_b32 v{vA_M}, v{vMC}")
    I(f"v_mov_b32 v{vA_L}, v{vLs}")
    I(f"s_mov_b32 s{t6}, 0")
    lab("L_gather")
    sBO, sBM = t0, t1
    I(f"s_lshl_b32 s{t2}, s{sG0}, 3")
    I(f"s_add_u32 s{t2}, s{t2}, s{sH}")
    I(f"s_lshl_b32 s{sBO}, s{t2}, 14")
    I(f"s_lshl_b32 s{t3}, s{t6}, 13")
    I(f"s_add_u32 s{sBO}, s{sBO}, s{t3}")
    I(f"s_lshl_b32 s{t3}, s{sW}, 10")
    I(f"s_add_u32 s{sBO}, s{sBO}, s{t3}")
    I(f"s_add_u32 s{sBO}, s{sBO}, {WS_O}")
    I(f"s_lshl_b32 s{sBM}, s{t2}, 9")
    I(f"s_lshl_b32 s{t3}, s{t6}, 8")
    I(f"s_add_u32 s{sBM}, s{sBM}, s{t3}")
    I(f"s_add_u32 s{sBM}, s{sBM}, {WS_ML}")
    I(f"v_lshlrev_b32 v{vT+2}, 4, v{vI}")
    I(f"s_lshl_b32 s{t3}, s{t6}, 12")
    I(f"v_add_u32 v{vOO}, s{t3}, v{vOO}")
    sSO, sSM = 24, 32
    for x in range(7):
        I(f"s_cmp_le_u32 s{sJ}, {x}")
        I(f"s_cselect_b32 s{t2}, {x+1}, {x}")
        I(f"s_lshl_b32 s{t3}, s{t2}, 17")
        I(f"s_add_u32 s{sSO+x}, s{sBO}, s{t3}")
        I(f"s_lshl_b32 s{t3}, s{t2}, 12")
        I(f"s_add_u32 s{sSM+x}, s{sBM}, s{t3}")
    I(f"s_mov_b32 s{t7}, 0")
    I(f"v_mov_b32 v{vT+3}, 0xfff")
    for ns in range(2, 9):
        I(f"s_cmp_eq_u32 s{sN}, {ns}")
        I(f"s_cbranch_scc1 L_g{ns}")
    I("s_branch L_fin")
    vGO, vGM = vPF, vPF + 32
    for ns in range(2, 9):
        nsrc = ns - 1
        lab(f"L_g{ns}")
        for x in range(nsrc):
            I(f"buffer_load_dwordx4 {vr(vGO+4*x,4)}, v{vL16}, {sr(SWS,4)}, s{sSO+x} offen sc1")
            I(f"buffer_load_dwordx4 {vr(vGM+4*x,4)}, v{vT+2}, {sr(SWS,4)}, s{sSM+x} offen sc1")
        I("s_waitcnt vmcnt(0)")
        acc, accm = vX + 6, vX + 7
        for x in range(nsrc):
            for r in range(4):
                I(f"v_xor_b32 v{vGO+4*x+r}, s{sP+r}, v{vGO+4*x+r}")
            I(f"v_xor_b32 v{vGM+4*x+2}, s{sT0}, v{vGM+4*x+2}")
            I(f"v_xor_b32 v{vGM+4*x+3}, s{sT1}, v{vGM+4*x+3}")
            if x == 0:
                I(f"v_or3_b32 v{acc}, v{vGO}, v{vGO+1}, v{vGO+2}")
                I(f"v_or_b32 v{acc}, v{acc}, v{vGO+3}")
                I(f"v_or_b32 v{accm}, v{vGM+2}, v{vGM+3}")
            else:
                I(f"v_or3_b32 v{acc}, v{acc}, v{vGO+4*x}, v{vGO+4*x+1}")
                I(f"v_or3_b32 v{acc}, v{acc}, v{vGO+4*x+2}, v{vGO+4*x+3}")
                I(f"v_or3_b32 v{accm}, v{accm}, v{vGM+4*x+2}, v{vGM+4*x+3}")
        I(f"v_and_b32 v{acc}, v{acc}, v{vT+3}")
        I(f"v_or_b32 v{acc}, v{acc}, v{accm}")
        I(f"v_cmp_ne_u32 vcc, 0, v{acc}")
        I(f"s_add_u32 s{t7}, s{t7}, 1")
        nop(3)
        I(f"s_cbranch_vccz L_c{ns}")
        I(f"s_cmp_lt_u32 s{t7}, 0x40000")
        if g.sleep_poll: I(f"s_sleep {g.sleep_poll}")
        I(f"s_cbranch_scc1 L_g{ns}")
        lab(f"L_c{ns}")
        g.stamp(8)
        vM = vX + 6
        I(f"v_max_f32 v{vM}, v{vA_M}, v{vGM}")
        for x in range(1, nsrc):
            I(f"v_max_f32 v{vM}, v{vM}, v{vGM+4*x}")
        I(f"v_sub_f32 v{vA_M}, v{vA_M}, v{vM}")
        for x in range(nsrc):
            I(f"v_sub_f32 v{vGM+4*x}, v{vGM+4*x}, v{vM}")
        I(f"v_exp_f32 v{vA_M}, v{vA_M}")
        for x in range(nsrc):
            I(f"v_exp_f32 v{vGM+4*x}, v{vGM+4*x}")
        nop(1)
        I(f"v_mul_f32 v{vA_L}, v{vA_L}, v{vA_M}")
        for r in range(4):
            I(f"v_mul_f32 v{vA_O+r}, v{vA_O+r}, v{vA_M}")
        for x in range(nsrc):
            I(f"v_fmac_f32 v{vA_L}, v{vGM+4*x+1}, v{vGM+4*x}")
            for r in range(4):
                I(f"v_fmac_f32 v{vA_O+r}, v{vGO+4*x+r}, v{vGM+4*x}")
        I("s_branch L_store1")
    lab("L_store1")
    I(f"v_rcp_f32 v{vA_L}, v{vA_L}")
    nop(1)
    for r in range(4):
        I(f"v_mul_f32 v{vA_O+r}, v{vA_O+r}, v{vA_L}")
    I(f"v_cvt_pk_bf16_f32 v{vA_O}, v{vA_O}, v{vA_O+1}")
    I(f"v_cvt_pk_bf16_f32 v{vA_O+1}, v{vA_O+2}, v{vA_O+3}")
    I(f"buffer_store_dwordx2 {vr(vA_O,2)}, v{vOO}, {sr(SO,4)}, 0 offen")
    I(f"s_or_b32 s{t0}, s{sJ}, s{sW}")
    I(f"s_cbranch_scc1 L_fin")
    I(f"s_lshl_b32 s{t0}, s{sH}, 5")
    I(f"s_lshl_b32 s{t1}, s{sB}, 2")
    I(f"s_add_u32 s{t0}, s{t0}, s{t1}")
    I(f"s_add_u32 s{t1}, s{sE}, 1")
    I(f"v_mov_b32 v{vX+8}, s{t1}")
    I(f"v_mov_b32 v{vX+9}, 0")
    I(f"s_mov_b64 exec, 1")
    I(f"buffer_store_dword v{vX+8}, v{vX+9}, {sr(SWS,4)}, s{t0} offen sc1")
    I(f"s_mov_b64 exec, -1")
    I("s_branch L_fin")
    lab("L_single")
    nop(4)
    for hq in range(2):
        I(f"v_rcp_f32 v{vX+hq}, v{vLs+4*hq}")
    nop(1)
    for hq in range(2):
        for r in range(4):
            I(f"v_mul_f32 v{vO+4*hq+r}, v{vO+4*hq+r}, v{vX+hq}")
        I(f"v_cvt_pk_bf16_f32 v{vO+4*hq}, v{vO+4*hq}, v{vO+4*hq+1}")
        I(f"v_cvt_pk_bf16_f32 v{vO+4*hq+1}, v{vO+4*hq+2}, v{vO+4*hq+3}")
    I(f"buffer_store_dwordx2 {vr(vO,2)}, v{vOO}, {sr(SO,4)}, 0 offen")
    I(f"v_add_u32 v{vOO}, 4096, v{vOO}")
    I(f"buffer_store_dwordx2 {vr(vO+4,2)}, v{vOO}, {sr(SO,4)}, 0 offen")
    lab("L_fin")
    if g.stamps:
        g.stamp(9)
        I("s_waitcnt lgkmcnt(0)")
        I(f"s_lshl_b32 s{t0}, s{sW}, 8")
        I(f"s_add_u32 s{t0}, s{t0}, s2")
        I(f"s_mul_i32 s{t0}, s{t0}, {g.nst*8}")
        I(f"s_add_u32 s{t0}, s{t0}, {STAMP_OFF}")
        I(f"s_add_u32 s{sWS}, s{sWS}, s{t0}")
        I(f"s_addc_u32 s{sWS+1}, s{sWS+1}, 0")
        I(f"v_mov_b32 v{vX+12}, 0")
        for k in range(g.nst):
            I(f"v_mov_b32 v{vX+10}, s{STB+2*k}")
            I(f"v_mov_b32 v{vX+11}, s{STB+2*k+1}")
            I(f"global_store_dwordx2 v{vX+12}, {vr(vX+10,2)}, {sr(sWS)} offset:{8*k}")
            nop(2)
    lab("L_end")
    I("s_endpgm")
    A('.section .rodata,"a"')
    A(".p2align 6")
    A(f".amdhsa_kernel {NAME}_kernel")
    A("  .amdhsa_next_free_vgpr 256")
    A("  .amdhsa_next_free_sgpr 102")
    A("  .amdhsa_accum_offset 256")
    A("  .amdhsa_group_segment_fixed_size 0")
    A("  .amdhsa_kernarg_size 64")
    A("  .amdhsa_user_sgpr_count 2")
    A("  .amdhsa_user_sgpr_kernarg_segment_ptr 1")
    A("  .amdhsa_system_sgpr_workgroup_id_x 1")
    A(".end_amdhsa_kernel")
    return "\n".join(x for x in g.L if x is not None) + "\n"

if __name__ == "__main__":
    open("k1.s", "w").write(gen())
    open("k1_st.s", "w").write(gen(stamps=True))
    print("ok")
```

```python
import sys
NAME = "standalone__paged_block_table_kv_pagedattention__sampling"

XB = 131072
X_TAB = XB
X_Q = XB + 4096
X_MAX = XB + 12288
LDS_BYTES = 163840
WS_EPOCH = 0
WS_ML = 4096
WS_O = 1 << 20
WS_USED = 8 << 20
STAMP_OFF = 128 << 20
KV_BYTES = 1028 * 16 * 8 * 128 * 2

class Gen:
    def __init__(self, stamps=False, nt=True, dump=None, sleep_poll=0):
        self.L = []
        self.stamps = stamps
        self.ntf = " nt" if nt else ""
        self.dump = dump
        self.nst = 0
        self.uid = 0
        self.sleep_poll = sleep_poll
    def A(self, s): self.L.append(s)
    def I(self, s): self.L.append("  " + s)
    def lab(self, s): self.L.append(s + ":")
    def nop(self, n):
        while n > 0:
            k = min(n, 16)
            self.I(f"s_nop {k-1}")
            n -= k
    def newlab(self, p):
        self.uid += 1
        return f"L_{p}_{self.uid}"
    def stamp(self, k):
        if self.stamps:
            self.I(f"s_memrealtime s[{STB+2*k}:{STB+2*k+1}]")
            self.nst = max(self.nst, k + 1)

sQ, sK, sV, sBT, sCLp, sOUT, sWS = 4, 6, 8, 10, 12, 14, 16
sW, sH, sSlot, sB, sJ, sN = 18, 19, 20, 21, 22, 23
SK, SV, SQ, ST, SO, SWS = 24, 28, 32, 36, 40, 44
sNB, sCL, sCNT, sNV, sE, sCs, sG0 = 48, 49, 50, 51, 52, 53, 54
sBlk = 55
sH256 = 59
sP = 60
sT0, sT1 = 64, 65
sNST = 66
sNSTEP = 67
sGB = 68
t0, t1, t2, t3, t4, t5, t6, t7 = 70, 71, 72, 73, 74, 75, 76, 77
STB = 80
vLane, vI, vG = 0, 1, 2
vKD = 4
vVD = 8
vKA = 12
vPW = 16
vPR = 17
vVR = 21
vNEG = 23
vG4 = 24
vMC = 25
vL16 = 27
vT = 28
vQF = 32
vKF = 64
vS = 80
vPF = 112
vVF = 32
vO = 48
vLs = 56
vONE = 64
vX = 240

def sr(a, n=2): return f"s[{a}:{a+n-1}]"
def vr(a, n): return f"v[{a}:{a+n-1}]"

def gen(stamps=False, nt=True, dump=None, sleep_poll=0):
    g = Gen(stamps, nt, dump, sleep_poll)
    A, I, lab, nop = g.A, g.I, g.lab, g.nop
    ntf = g.ntf
    A(f"; @launch grid=(256,1,1) block=(512,1,1) lds={LDS_BYTES}")
    A('.amdgcn_target "amdgcn-amd-amdhsa--gfx950"')
    A(".text")
    A(f".globl {NAME}_kernel")
    A(".p2align 8")
    A(f".type {NAME}_kernel,@function")
    A(f"{NAME}_kernel:")
    I("s_cmp_ge_u32 s2, 256")
    I("s_cbranch_scc1 L_end")
    g.stamp(0)
    if g.stamps: I(f"s_mov_b64 s[{STB+16}:{STB+17}], 0")
    I(f"s_load_dwordx8 s[4:11], s[0:1], 0")
    I(f"s_load_dwordx4 s[12:15], s[0:1], 32")
    I(f"s_load_dwordx2 s[16:17], s[0:1], 56")
    I(f"v_lshrrev_b32 v{vT}, 6, v0")
    I(f"v_and_b32 v{vLane}, 63, v0")
    I(f"s_and_b32 s{sH}, s2, 7")
    I(f"v_readfirstlane_b32 s{sW}, v{vT}")
    I(f"s_lshr_b32 s{sSlot}, s2, 3")
    I(f"v_and_b32 v{vI}, 15, v{vLane}")
    I(f"v_lshrrev_b32 v{vG}, 4, v{vLane}")
    I(f"v_lshlrev_b32 v{vL16}, 4, v{vLane}")
    vR, vAR = vX, vX + 4
    I(f"v_lshlrev_b32 v{vG4}, 2, v{vG}")
    I(f"v_add_u32 v{vT}, 17, v{vG4}")
    I(f"v_cvt_f32_u32 v{vT}, v{vT}")
    I(f"v_add_f32 v{vT+1}, 1.0, v{vT}")
    I(f"v_add_f32 v{vT+2}, 2.0, v{vT}")
    I(f"v_add_f32 v{vT+3}, 1.0, v{vT+2}")
    for f in range(4):
        I(f"v_rcp_f32 v{vR+f}, v{vT+f}")
    vOC, vOE, vM8 = vX + 8, vX + 9, vX + 10
    I(f"v_and_b32 v{vOC}, 7, v{vLane}")
    I(f"v_lshlrev_b32 v{vOC}, 2, v{vOC}")
    I(f"s_lshl_b32 s{t0}, s{sH}, 5")
    I(f"v_add_u32 v{vOE}, s{t0}, v{vOC}")
    I(f"v_cmp_gt_u32 vcc, 8, v{vI}")
    for f in range(4):
        I(f"v_fma_f32 v{vAR+f}, v{vR+f}, -0.5, 1.0")
    I(f"v_cndmask_b32 v{vM8}, 0, -1, vcc")
    vTO = vX + 11
    I(f"s_lshl_b32 s{t1}, s{sW}, 10")
    I(f"v_add_u32 v{vTO}, s{t1}, v{vL16}")
    I(f"s_add_u32 s{t1}, s{t1}, {X_TAB}")
    I(f"s_mov_b32 m0, s{t1}")
    I(f"s_lshl_b32 s{sH256}, s{sH}, 8")
    I(f"s_mov_b32 s{ST+2}, 4096")
    I(f"s_mov_b32 s{ST+3}, 0x20000")
    I("s_waitcnt lgkmcnt(0)")
    g.stamp(1)
    vCL, vE = vX + 12, vX + 13
    I(f"global_load_dword v{vCL}, v{vOC}, {sr(sCLp)}")
    I(f"global_load_dword v{vE}, v{vOE}, {sr(sWS)} sc1")
    I(f"s_mov_b32 s{ST}, s{sBT}")
    I(f"s_and_b32 s{ST+1}, s{sBT+1}, 0xffff")
    I(f"s_cmp_ge_u32 s{sW}, 4")
    I(f"s_cbranch_scc1 L_notab")
    I(f"buffer_load_dwordx4 v{vTO}, {sr(ST,4)}, 0 offen lds")
    lab("L_notab")
    for (S, p, nbytes) in ((SK, sK, KV_BYTES), (SV, sV, KV_BYTES), (SQ, sQ, 524288), (SO, sOUT, 524288), (SWS, sWS, WS_USED)):
        I(f"s_mov_b32 s{S}, s{p}")
        I(f"s_and_b32 s{S+1}, s{p+1}, 0xffff")
        I(f"s_mov_b32 s{S+2}, {nbytes}")
        I(f"s_mov_b32 s{S+3}, 0x20000")
    for jj in range(4):
        I(f"v_add_u32 v{vT}, {4*jj}, v{vG}")
        I(f"v_xor_b32 v{vT+1}, v{vT}, v{vI}")
        I(f"v_lshlrev_b32 v{vT+1}, 4, v{vT+1}")
        I(f"v_lshl_add_u32 v{vT+1}, v{vT}, 11, v{vT+1}")
        if jj: I(f"v_subrev_u32 v{vKD+jj}, {jj*1024}, v{vT+1}")
        else:  I(f"v_mov_b32 v{vKD}, v{vT+1}")
    for jj in range(4):
        I(f"v_add_u32 v{vT}, {4*jj}, v{vG}")
        I(f"v_lshlrev_b32 v{vT+1}, 1, v{vG}")
        if jj >> 1: I(f"v_or_b32 v{vT+1}, 8, v{vT+1}")
        I(f"v_xor_b32 v{vT+1}, v{vT+1}, v{vI}")
        I(f"v_lshlrev_b32 v{vT+1}, 4, v{vT+1}")
        I(f"v_lshl_add_u32 v{vT+1}, v{vT}, 11, v{vT+1}")
        if jj: I(f"v_subrev_u32 v{vVD+jj}, {jj*1024}, v{vT+1}")
        else:  I(f"v_mov_b32 v{vVD}, v{vT+1}")
    I(f"s_lshl_b32 s{t0}, s{sW}, 12")
    for s in range(4):
        I(f"v_add_u32 v{vT}, {4*s}, v{vG}")
        I(f"v_xor_b32 v{vT}, v{vT}, v{vI}")
        I(f"v_lshlrev_b32 v{vT}, 4, v{vT}")
        I(f"v_lshl_add_u32 v{vT}, v{vI}, 8, v{vT}")
        I(f"v_add_u32 v{vKA+s}, s{t0}, v{vT}")
    vQD = vX + 14
    I(f"s_lshl_b32 s{t1}, s{sW}, 2")
    I(f"v_add_u32 v{vT}, s{t1}, v{vG}")
    I(f"v_and_b32 v{vT+1}, 15, v{vT}")
    I(f"v_xor_b32 v{vT+1}, v{vT+1}, v{vI}")
    I(f"v_lshlrev_b32 v{vT+1}, 4, v{vT+1}")
    I(f"v_lshl_add_u32 v{vQD}, v{vT}, 8, v{vT+1}")
    I(f"v_mov_b32 v{vNEG}, 0xff800000")
    I(f"v_mov_b32 v{vT+3}, 0x800")
    vTINY = vKF
    I(f"v_mov_b32 v{vTINY}, 0x0da24260")
    I("s_waitcnt vmcnt(0)")
    g.stamp(2)
    vNB, vCS, vNP, vPP = vX + 15, vT, vT + 1, vT + 2
    import struct, math
    cbits = struct.unpack("<I", struct.pack("<f", (128 ** -0.5) * math.log2(math.e)))[0]
    I(f"v_cmp_gt_i32 vcc, 1, v{vCL}")
    I(f"v_min_i32 v{vCL}, 0x800, v{vCL}")
    I(f"v_mov_b32 v{vCS}, 0x{cbits:08x}")
    I(f"v_cndmask_b32 v{vCL}, v{vCL}, v{vT+3}, vcc")
    I(f"v_cndmask_b32 v{vCS}, v{vCS}, v{vTINY}, vcc")
    I(f"v_add_u32 v{vNB}, 15, v{vCL}")
    I(f"v_lshrrev_b32 v{vNB}, 4, v{vNB}")
    I(f"v_and_b32 v{vNB}, v{vNB}, v{vM8}")
    I(f"v_cvt_f32_u32 v{vT+3}, v{vNB}")
    for f in range(4):
        I(f"v_fma_f32 v{vR+f}, v{vT+3}, v{vR+f}, v{vAR+f}")
    for f in range(4):
        I(f"v_cvt_u32_f32 v{vR+f}, v{vR+f}")
    I(f"v_lshl_or_b32 v{vR}, v{vR+1}, 8, v{vR}")
    I(f"v_lshl_or_b32 v{vR+2}, v{vR+3}, 8, v{vR+2}")
    I(f"v_lshl_or_b32 v{vNP}, v{vR+2}, 16, v{vR}")
    nop(2)
    I(f"v_add_u32_dpp v{vPP}, v{vNP}, v{vNP} row_shr:1 row_mask:0xf bank_mask:0xf bound_ctrl:0")
    nop(2)
    I(f"v_add_u32_dpp v{vPP}, v{vPP}, v{vPP} row_shr:2 row_mask:0xf bank_mask:0xf bound_ctrl:0")
    nop(2)
    I(f"v_add_u32_dpp v{vPP}, v{vPP}, v{vPP} row_shr:4 row_mask:0xf bank_mask:0xf bound_ctrl:0")
    I(f"v_add_u32 v{vR}, 0x5f5f5f5f, v{vPP}")
    I(f"v_and_b32 v{vR}, 0x80808080, v{vR}")
    I(f"v_bcnt_u32_b32 v{vR}, v{vR}, 0")
    nop(1)
    I(f"v_readlane_b32 s{t0}, v{vR}, 7")
    I(f"v_readlane_b32 s{t1}, v{vR}, 23")
    I(f"v_readlane_b32 s{t2}, v{vR}, 39")
    I(f"v_readlane_b32 s{t3}, v{vR}, 55")
    I(f"s_add_u32 s{t0}, s{t0}, s{t1}")
    I(f"s_add_u32 s{t2}, s{t2}, s{t3}")
    I(f"s_add_u32 s{t0}, s{t0}, s{t2}")
    I(f"s_and_b32 s{t1}, s{t0}, 3")
    I(f"s_lshl_b32 s{t1}, s{t1}, 3")
    I(f"s_lshr_b32 s{t2}, s{t0}, 2")
    I(f"s_lshl_b32 s{t2}, s{t2}, 4")
    I(f"v_bfe_u32 v{vPP}, v{vPP}, s{t1}, 8")
    I(f"v_bfe_u32 v{vNP}, v{vNP}, s{t1}, 8")
    I(f"v_cmp_lt_u32 vcc, s{sSlot}, v{vPP}")
    nop(2)
    I(f"s_lshr_b64 {sr(t4)}, vcc, s{t2}")
    I(f"s_and_b32 s{t4}, s{t4}, 0xff")
    I(f"s_cbranch_scc0 L_end")
    I(f"s_ff1_i32_b32 s{sB}, s{t4}")
    I(f"s_add_u32 s{t2}, s{t2}, s{sB}")
    I(f"v_readlane_b32 s{sN}, v{vNP}, s{t2}")
    I(f"v_readlane_b32 s{sG0}, v{vPP}, s{t2}")
    I(f"v_readlane_b32 s{sNB}, v{vNB}, s{t2}")
    I(f"v_readlane_b32 s{sCL}, v{vCL}, s{t2}")
    I(f"v_readlane_b32 s{sE}, v{vE}, s{t2}")
    I(f"v_readlane_b32 s{sCs}, v{vCS}, s{t2}")
    I(f"s_sub_u32 s{sG0}, s{sG0}, s{sN}")
    I(f"s_sub_u32 s{sJ}, s{sSlot}, s{sG0}")
    I(f"s_lshl_b32 s{t0}, s{sB}, 9")
    I(f"s_add_u32 s{t0}, s{t0}, {X_TAB}")
    I(f"v_mul_u32_u24 v{vT}, s{sN}, v{vLane}")
    I(f"v_add_u32 v{vT}, s{sJ}, v{vT}")
    I(f"v_cmp_gt_u32 vcc, s{sNB}, v{vT}")
    I(f"v_min_u32 v{vT}, 127, v{vT}")
    I(f"v_lshl_add_u32 v{vT}, v{vT}, 2, s{t0}")
    I("s_barrier")
    I(f"ds_read_b32 v{vT+1}, v{vT}")
    I(f"s_bcnt1_i32_b32 s{sCNT}, vcc_lo")
    I(f"s_sub_u32 s{sNV}, s{sCNT}, s{sW}")
    I(f"s_add_u32 s{sNV}, s{sNV}, 7")
    I(f"s_ashr_i32 s{sNV}, s{sNV}, 3")
    I(f"s_add_u32 s{sNST}, s{sCNT}, 7")
    I(f"s_lshr_b32 s{sNST}, s{sNST}, 3")
    I(f"s_add_u32 s{sNSTEP}, s{sCNT}, 1")
    I(f"s_lshr_b32 s{sNSTEP}, s{sNSTEP}, 1")
    I(f"s_lshl_b32 s{t1}, s{sB}, 16")
    I(f"s_lshl_b32 s{t2}, s{sH}, 13")
    I(f"s_add_u32 s{t1}, s{t1}, s{t2}")
    I(f"s_lshl_b32 s{t2}, s{sW}, 10")
    I(f"s_add_u32 s{t2}, s{t2}, {X_Q}")
    I(f"s_mov_b32 m0, s{t2}")
    I(f"s_mul_i32 s{sGB}, s{sN}, s{sW}")
    I(f"s_add_u32 s{sGB}, s{sGB}, s{sJ}")
    I(f"buffer_load_dwordx4 v{vQD}, {sr(SQ,4)}, s{t1} offen lds")
    I(f"s_add_u32 s{t3}, s{sW}, 8")
    I(f"s_add_u32 s{t4}, s{sW}, 16")
    I(f"s_add_u32 s{t5}, s{sW}, 24")
    I("s_waitcnt lgkmcnt(0)")
    I(f"v_lshl_add_u32 v{vT+1}, v{vT+1}, 15, s{sH256}")
    I(f"s_lshl_b32 s{t6}, s{sW}, 12")
    I(f"s_mov_b32 m0, s{t6}")
    I(f"v_readlane_b32 s{sBlk}, v{vT+1}, s{sW}")
    I(f"v_readlane_b32 s{sBlk+1}, v{vT+1}, s{t3}")
    I(f"v_readlane_b32 s{sBlk+2}, v{vT+1}, s{t4}")
    I(f"v_readlane_b32 s{sBlk+3}, v{vT+1}, s{t5}")
    g.stamp(3)
    nop(4)
    def dma_block(voff, srd, k):
        for jj in range(4):
            I(f"buffer_load_dwordx4 v{voff+jj}, {sr(srd,4)}, s{sBlk+k} offen offset:{jj*1024}{ntf} lds")
    def set_m0(k):
        if k: I(f"s_add_u32 s{t0}, s{t6}, {k*32768}")
        I(f"s_mov_b32 m0, s{t0 if k else t6}")
        I("s_nop 0")
    for n in (4, 3, 2, 1):
        I(f"s_cmp_ge_i32 s{sNV}, {n}")
        I(f"s_cbranch_scc1 L_k{n}")
    I("s_branch L_k0")
    def q_frags():
        I(f"s_sub_u32 s{t0}, {X_Q}, s{t6}")
        for s in range(4):
            I(f"v_add_u32 v{vT+s}, s{t0}, v{vKA+s}")
        I("s_barrier")
        for hq in range(2):
            for s in range(4):
                I(f"ds_read_b128 {vr(vQF+16*hq+4*s,4)}, v{vT+s} offset:{hq*4096}")
    for n in (4, 3, 2, 1, 0):
        lab(f"L_k{n}")
        for k in range(n):
            if k: set_m0(k)
            dma_block(vKD, SK, k)
        I(f"s_waitcnt vmcnt({4*n})")
        q_frags()
        for k in range(n):
            if k == 2:
                for s in range(4): I(f"v_add_u32 v{vKA+s}, 0x10000, v{vKA+s}")
            I(f"s_waitcnt vmcnt({4*(n-1)})")
            for s in range(4):
                I(f"ds_read_b128 {vr(vKF+4*s,4)}, v{vKA+s} offset:{(k&1)*32768}")
            set_m0(k)
            I("s_waitcnt lgkmcnt(0)")
            dma_block(vVD, SV, k)
            for hq in range(2):
                for s in range(4):
                    c = "0" if s == 0 else vr(vS+8*k+4*hq, 4)
                    I(f"v_mfma_f32_16x16x32_bf16 {vr(vS+8*k+4*hq,4)}, {vr(vKF+4*s,4)}, {vr(vQF+16*hq+4*s,4)}, {c}")
        if n == 0: I("s_waitcnt lgkmcnt(0)")
        if n: I("s_branch L_kdone")
    lab("L_kdone")
    I(f"s_bitcmp1_b32 s{sCNT}, 0")
    I(f"s_cbranch_scc0 L_nozero")
    I(f"s_and_b32 s{t0}, s{sCNT}, 7")
    I(f"s_cmp_lg_u32 s{t0}, s{sW}")
    I(f"s_cbranch_scc1 L_nozero")
    I(f"s_lshl_b32 s{t0}, s{sCNT}, 12")
    I(f"v_add_u32 v{vT}, s{t0}, v{vL16}")
    for x in range(4): I(f"v_mov_b32 v{vX+x}, 0")
    for x in range(4): I(f"ds_write_b128 v{vT}, {vr(vX,4)} offset:{x*1024}")
    lab("L_nozero")
    I(f"s_lshl_b32 s{t0}, s{sW}, 1")
    I(f"v_lshrrev_b32 v{vT}, 1, v{vG}")
    I(f"v_add_u32 v{vT}, s{t0}, v{vT}")
    I(f"v_xor_b32 v{vT}, v{vT}, v{vI}")
    I(f"v_lshlrev_b32 v{vT}, 4, v{vT}")
    I(f"v_lshl_add_u32 v{vT}, v{vI}, 10, v{vT}")
    I(f"v_and_b32 v{vT+1}, 1, v{vG}")
    I(f"v_lshl_add_u32 v{vT}, v{vT+1}, 3, v{vT}")
    I(f"v_add_u32 v{vPW}, {XB}, v{vT}")
    for u in range(4):
        I(f"v_add_u32 v{vT}, {4*u}, v{vG}")
        I(f"v_xor_b32 v{vT}, v{vT}, v{vI}")
        I(f"v_lshlrev_b32 v{vT}, 4, v{vT}")
        I(f"v_lshl_add_u32 v{vT}, v{vI}, 10, v{vT}")
        I(f"v_add_u32 v{vPR+u}, {XB}, v{vT}")
    I(f"v_lshrrev_b32 v{vT}, 2, v{vI}")
    I(f"v_and_b32 v{vT+1}, 1, v{vG}")
    I(f"v_lshl_add_u32 v{vT+2}, v{vT+1}, 2, v{vT}")
    I(f"v_lshl_add_u32 v{vT+3}, v{vT+1}, 3, v{vT}")
    I(f"v_lshlrev_b32 v{vT+2}, 1, v{vT+2}")
    I(f"v_bfe_u32 v{vT}, v{vI}, 1, 1")
    I(f"s_lshl_b32 s{t0}, s{sW}, 1")
    I(f"v_add_u32 v{vT}, s{t0}, v{vT}")
    I(f"v_xor_b32 v{vT}, v{vT}, v{vT+2}")
    I(f"v_lshlrev_b32 v{vT}, 4, v{vT}")
    I(f"v_lshl_add_u32 v{vT}, v{vT+3}, 8, v{vT}")
    I(f"v_and_b32 v{vT+1}, 1, v{vI}")
    I(f"v_lshl_add_u32 v{vT}, v{vT+1}, 3, v{vT}")
    I(f"v_lshrrev_b32 v{vT+1}, 1, v{vG}")
    I(f"v_lshl_add_u32 v{vVR}, v{vT+1}, 12, v{vT}")
    I(f"v_add_u32 v{vVR+1}, 0x10000, v{vVR}")
    for k in range(4):
        l = g.newlab("nomask")
        I(f"s_mul_i32 s{t0}, s{sN}, {8*k}")
        I(f"s_add_u32 s{t0}, s{t0}, s{sGB}")
        I(f"s_lshl_b32 s{t0}, s{t0}, 4")
        I(f"s_sub_i32 s{t0}, s{sCL}, s{t0}")
        I(f"s_cmp_ge_i32 s{t0}, 16")
        I(f"s_cbranch_scc1 {l}")
        nop(8)
        for r in range(4):
            I(f"s_sub_i32 s{t1}, s{t0}, {r}")
            I(f"v_cmp_le_i32 vcc, s{t1}, v{vG4}")
            nop(2)
            for hq in range(2):
                x = vS + 8*k + 4*hq + r
                I(f"v_cndmask_b32 v{x}, v{x}, v{vNEG}, vcc")
        lab(l)
    nop(8)
    for hq in range(2):
        xs = [vS + 8*k + 4*hq + r for k in range(4) for r in range(4)]
        d = vX + hq
        I(f"v_max3_f32 v{d}, v{xs[0]}, v{xs[1]}, v{xs[2]}")
        rest = xs[3:]
        while len(rest) >= 2:
            I(f"v_max3_f32 v{d}, v{d}, v{rest[0]}, v{rest[1]}"); rest = rest[2:]
        if rest: I(f"v_max_f32 v{d}, v{d}, v{rest[0]}")
    for perm in ("v_permlane32_swap_b32", "v_permlane16_swap_b32"):
        I(f"v_mov_b32 v{vX+2}, v{vX}")
        I(f"v_mov_b32 v{vX+3}, v{vX+1}")
        nop(2)
        I(f"{perm} v{vX}, v{vX+2}")
        I(f"{perm} v{vX+1}, v{vX+3}")
        nop(1)
        I(f"v_max_f32 v{vX}, v{vX}, v{vX+2}")
        I(f"v_max_f32 v{vX+1}, v{vX+1}, v{vX+3}")
    I(f"s_lshl_b32 s{t0}, s{sW}, 2")
    I(f"s_add_u32 s{t0}, s{t0}, {X_MAX}")
    I(f"v_lshl_add_u32 v{vT}, v{vI}, 5, s{t0}")
    I(f"ds_write_b32 v{vT}, v{vX}")
    I(f"ds_write_b32 v{vT}, v{vX+1} offset:512")
    I(f"v_lshlrev_b32 v{vT+1}, 5, v{vI}")
    I(f"v_add_u32 v{vT+1}, {X_MAX}, v{vT+1}")
    I("s_waitcnt lgkmcnt(0)")
    I("s_barrier")
    g.stamp(4)
    for hq in range(2):
        I(f"ds_read_b128 {vr(vX+8*hq,4)}, v{vT+1} offset:{hq*512}")
        I(f"ds_read_b128 {vr(vX+8*hq+4,4)}, v{vT+1} offset:{hq*512+16}")
    I("s_waitcnt lgkmcnt(0)")
    I("s_barrier")
    for hq in range(2):
        b = vX + 8*hq
        I(f"v_max3_f32 v{b}, v{b}, v{b+1}, v{b+2}")
        I(f"v_max3_f32 v{b+3}, v{b+3}, v{b+4}, v{b+5}")
        I(f"v_max3_f32 v{b}, v{b}, v{b+6}, v{b+7}")
        I(f"v_max_f32 v{b}, v{b}, v{b+3}")
        I(f"v_mul_f32 v{vMC+hq}, s{sCs}, v{b}")
    for k in range(4):
        for hq in range(2):
            b = vS + 8*k + 4*hq
            for r in range(4):
                I(f"v_fma_f32 v{b+r}, v{b+r}, s{sCs}, -v{vMC+hq}")
            for r in range(4):
                I(f"v_exp_f32 v{b+r}, v{b+r}")
            nop(1)
            I(f"v_cvt_pk_bf16_f32 v{b}, v{b}, v{b+1}")
            I(f"v_cvt_pk_bf16_f32 v{b+1}, v{b+2}, v{b+3}")
            I(f"ds_write_b64 v{vPW}, {vr(b,2)} offset:{hq*16384 + k*256}")
    for x in range(4): I(f"v_mov_b32 v{vONE+x}, 0x3f803f80")
    I("s_waitcnt lgkmcnt(0)")
    I("s_barrier")
    for s in range(4):
        if s:
            I(f"s_cmp_le_u32 s{sNST}, {s}")
            I(f"s_cbranch_scc1 L_pdone")
        for u in range(4):
            t = 4*s + u
            for hq in range(2):
                I(f"ds_read_b128 {vr(vPF+8*t+4*hq,4)}, v{vPR+u} offset:{hq*16384 + s*256}")
        I("s_waitcnt lgkmcnt(0)")
        for u in range(4):
            t = 4*s + u
            for hq in range(2):
                c = "0" if t == 0 else vr(vLs+4*hq, 4)
                I(f"v_mfma_f32_16x16x32_bf16 {vr(vLs+4*hq,4)}, {vr(vONE,4)}, {vr(vPF+8*t+4*hq,4)}, {c}")
    lab("L_pdone")
    g.stamp(5)
    for s in range(4):
        if s:
            I(f"s_cmp_le_u32 s{sNST}, {s}")
            I(f"s_cbranch_scc1 L_pvdone")
        lw = g.newlab("vw")
        I(f"s_sub_i32 s{t0}, s{sNV}, {s+1}")
        for r in (3, 2, 1):
            if r > 3 - s: continue
            l = g.newlab("vw")
            I(f"s_cmp_lt_i32 s{t0}, {r}")
            I(f"s_cbranch_scc1 {l}")
            I(f"s_waitcnt vmcnt({4*r})")
            I(f"s_branch {lw}")
            lab(l)
        I("s_waitcnt vmcnt(0)")
        lab(lw)
        I("s_barrier")
        if True:
            pass
        ldone = g.newlab("st")
        lpart = g.newlab("part")
        I(f"s_cmp_lt_u32 s{sNSTEP}, {4*s+4}")
        I(f"s_cbranch_scc1 {lpart}")
        def reads(u):
            t = 4*s + u
            base = vVR + (t >> 3)
            I(f"ds_read_b64_tr_b16 {vr(vVF+4*u,2)}, v{base} offset:{(t&7)*8192}")
            I(f"ds_read_b64_tr_b16 {vr(vVF+4*u+2,2)}, v{base} offset:{(t&7)*8192+1024}")
        def mfmas(u):
            t = 4*s + u
            for hq in range(2):
                c = "0" if t == 0 else vr(vO+4*hq, 4)
                I(f"v_mfma_f32_16x16x32_bf16 {vr(vO+4*hq,4)}, {vr(vVF+4*u,4)}, {vr(vPF+8*t+4*hq,4)}, {c}")
        for u in range(4): reads(u)
        for u in range(4):
            I(f"s_waitcnt lgkmcnt({2*(3-u)})")
            mfmas(u)
        I(f"s_branch {ldone}")
        lab(lpart)
        for u in range(3):
            if u:
                I(f"s_cmp_le_u32 s{sNSTEP}, {4*s+u}")
                I(f"s_cbranch_scc1 {ldone}")
            reads(u)
            I("s_waitcnt lgkmcnt(0)")
            mfmas(u)
        lab(ldone)
    lab("L_pvdone")
    g.stamp(6)
    I(f"s_lshl_b32 s{t0}, s{sE}, 3")
    I(f"s_or_b32 s{t0}, s{t0}, s{sB}")
    I(f"s_mul_i32 s{sT0}, s{t0}, 0x9e3779b1")
    I(f"s_add_u32 s{sT0}, s{sT0}, 0x85ebca6b")
    I(f"s_mul_i32 s{sT1}, s{t0}, 0xc2b2ae35")
    I(f"s_add_u32 s{sT1}, s{sT1}, 0x27d4eb2f")
    I(f"s_and_b32 s{sP}, s{sT0}, 0xfff")
    I(f"s_bfe_u32 s{sP+1}, s{sT0}, 0xc000c")
    I(f"s_lshr_b32 s{sP+2}, s{sT0}, 24")
    I(f"s_lshl_b32 s{t1}, s{sT1}, 8")
    I(f"s_and_b32 s{t1}, s{t1}, 0xf00")
    I(f"s_or_b32 s{sP+2}, s{sP+2}, s{t1}")
    I(f"s_bfe_u32 s{sP+3}, s{sT1}, 0xc0004")
    vOO = vT
    I(f"s_lshl_b32 s{t0}, s{sB}, 16")
    I(f"s_lshl_b32 s{t1}, s{sH}, 13")
    I(f"s_add_u32 s{t0}, s{t0}, s{t1}")
    I(f"s_lshl_b32 s{t1}, s{sW}, 5")
    I(f"s_add_u32 s{t0}, s{t0}, s{t1}")
    I(f"v_lshlrev_b32 v{vOO}, 8, v{vI}")
    I(f"v_lshl_add_u32 v{vOO}, v{vG}, 3, v{vOO}")
    I(f"v_add_u32 v{vOO}, s{t0}, v{vOO}")
    I(f"s_cmp_eq_u32 s{sN}, 1")
    I(f"s_cbranch_scc1 L_single")
    sOw0, sOw1, sMe = t2, t3, t4
    I(f"s_mul_i32 s{sOw0}, s{sW}, s{sN}")
    I(f"s_lshl_b32 s{t1}, s{sN}, 3")
    I(f"s_add_u32 s{sOw1}, s{sOw0}, s{t1}")
    I(f"s_lshr_b32 s{sOw0}, s{sOw0}, 4")
    I(f"s_lshr_b32 s{sOw1}, s{sOw1}, 4")
    I(f"s_lshl_b32 s{t5}, s2, 14")
    I(f"s_lshl_b32 s{t1}, s{sW}, 10")
    I(f"s_add_u32 s{t5}, s{t5}, s{t1}")
    I(f"s_add_u32 s{t5}, s{t5}, {WS_O}")
    I(f"v_mov_b32 v{vT+1}, 0xfffff000")
    nop(2)
    for hq, own in ((0, sOw0), (1, sOw1)):
        l = g.newlab("nopub")
        I(f"s_cmp_eq_u32 s{own}, s{sJ}")
        I(f"s_cbranch_scc1 {l}")
        for r in range(4):
            I(f"v_and_b32 v{vX+4*hq+r}, v{vO+4*hq+r}, v{vT+1}")
        for r in range(4):
            I(f"v_or_b32 v{vX+4*hq+r}, s{sP+r}, v{vX+4*hq+r}")
        I(f"buffer_store_dwordx4 {vr(vX+4*hq,4)}, v{vL16}, {sr(SWS,4)}, s{t5} offen offset:0 sc1") if hq == 0 else None
        if hq == 1:
            I(f"s_add_u32 s{t1}, s{t5}, 8192")
            I(f"buffer_store_dwordx4 {vr(vX+4,4)}, v{vL16}, {sr(SWS,4)}, s{t1} offen sc1")
        lab(l)
    I(f"s_cmp_lg_u32 s{sW}, 0")
    I(f"s_cbranch_scc1 L_noml")
    I(f"s_lshl_b32 s{t1}, s2, 9")
    I(f"s_add_u32 s{t1}, s{t1}, {WS_ML}")
    I(f"s_mov_b64 exec, 0xffff")
    for hq in range(2):
        b = vX + 8 + 4*hq
        I(f"v_mov_b32 v{b}, v{vMC+hq}")
        I(f"v_mov_b32 v{b+1}, v{vLs+4*hq}")
        I(f"v_mov_b32 v{b+2}, s{sT0}")
        I(f"v_mov_b32 v{b+3}, s{sT1}")
        I(f"buffer_store_dwordx4 {vr(b,4)}, v{vL16}, {sr(SWS,4)}, s{t1} offen offset:{hq*256} sc1")
    I(f"s_mov_b64 exec, -1")
    lab("L_noml")
    g.stamp(7)
    I(f"s_cmp_eq_u32 s{sOw0}, s{sJ}")
    I(f"s_cbranch_scc1 L_own0")
    I(f"s_cmp_eq_u32 s{sOw1}, s{sJ}")
    I(f"s_cbranch_scc0 L_fin")
    vA_O, vA_M, vA_L = vX, vX + 4, vX + 5
    for r in range(4): I(f"v_mov_b32 v{vA_O+r}, v{vO+4+r}")
    I(f"v_mov_b32 v{vA_M}, v{vMC+1}")
    I(f"v_mov_b32 v{vA_L}, v{vLs+4}")
    I(f"s_mov_b32 s{t6}, 1")
    I(f"s_branch L_gather")
    lab("L_own0")
    for r in range(4): I(f"v_mov_b32 v{vA_O+r}, v{vO+r}")
    I(f"v_mov_b32 v{vA_M}, v{vMC}")
    I(f"v_mov_b32 v{vA_L}, v{vLs}")
    I(f"s_mov_b32 s{t6}, 0")
    lab("L_gather")
    sBO, sBM = t0, t1
    I(f"s_lshl_b32 s{t2}, s{sG0}, 3")
    I(f"s_add_u32 s{t2}, s{t2}, s{sH}")
    I(f"s_lshl_b32 s{sBO}, s{t2}, 14")
    I(f"s_lshl_b32 s{t3}, s{t6}, 13")
    I(f"s_add_u32 s{sBO}, s{sBO}, s{t3}")
    I(f"s_lshl_b32 s{t3}, s{sW}, 10")
    I(f"s_add_u32 s{sBO}, s{sBO}, s{t3}")
    I(f"s_add_u32 s{sBO}, s{sBO}, {WS_O}")
    I(f"s_lshl_b32 s{sBM}, s{t2}, 9")
    I(f"s_lshl_b32 s{t3}, s{t6}, 8")
    I(f"s_add_u32 s{sBM}, s{sBM}, s{t3}")
    I(f"s_add_u32 s{sBM}, s{sBM}, {WS_ML}")
    I(f"v_lshlrev_b32 v{vT+2}, 4, v{vI}")
    I(f"s_lshl_b32 s{t3}, s{t6}, 12")
    I(f"v_add_u32 v{vOO}, s{t3}, v{vOO}")
    sSO, sSM = 24, 32
    for x in range(7):
        I(f"s_cmp_le_u32 s{sJ}, {x}")
        I(f"s_cselect_b32 s{t2}, {x+1}, {x}")
        I(f"s_lshl_b32 s{t3}, s{t2}, 17")
        I(f"s_add_u32 s{sSO+x}, s{sBO}, s{t3}")
        I(f"s_lshl_b32 s{t3}, s{t2}, 12")
        I(f"s_add_u32 s{sSM+x}, s{sBM}, s{t3}")
    I(f"s_mov_b32 s{t7}, 0")
    I(f"v_mov_b32 v{vT+3}, 0xfff")
    for ns in range(2, 9):
        I(f"s_cmp_eq_u32 s{sN}, {ns}")
        I(f"s_cbranch_scc1 L_g{ns}")
    I("s_branch L_fin")
    vGO, vGM = vPF, vPF + 32
    for ns in range(2, 9):
        nsrc = ns - 1
        lab(f"L_g{ns}")
        for x in range(nsrc):
            I(f"buffer_load_dwordx4 {vr(vGO+4*x,4)}, v{vL16}, {sr(SWS,4)}, s{sSO+x} offen sc1")
            I(f"buffer_load_dwordx4 {vr(vGM+4*x,4)}, v{vT+2}, {sr(SWS,4)}, s{sSM+x} offen sc1")
        I("s_waitcnt vmcnt(0)")
        acc, accm = vX + 6, vX + 7
        for x in range(nsrc):
            for r in range(4):
                I(f"v_xor_b32 v{vGO+4*x+r}, s{sP+r}, v{vGO+4*x+r}")
            I(f"v_xor_b32 v{vGM+4*x+2}, s{sT0}, v{vGM+4*x+2}")
            I(f"v_xor_b32 v{vGM+4*x+3}, s{sT1}, v{vGM+4*x+3}")
            if x == 0:
                I(f"v_or3_b32 v{acc}, v{vGO}, v{vGO+1}, v{vGO+2}")
                I(f"v_or_b32 v{acc}, v{acc}, v{vGO+3}")
                I(f"v_or_b32 v{accm}, v{vGM+2}, v{vGM+3}")
            else:
                I(f"v_or3_b32 v{acc}, v{acc}, v{vGO+4*x}, v{vGO+4*x+1}")
                I(f"v_or3_b32 v{acc}, v{acc}, v{vGO+4*x+2}, v{vGO+4*x+3}")
                I(f"v_or3_b32 v{accm}, v{accm}, v{vGM+4*x+2}, v{vGM+4*x+3}")
        I(f"v_and_b32 v{acc}, v{acc}, v{vT+3}")
        I(f"v_or_b32 v{acc}, v{acc}, v{accm}")
        I(f"v_cmp_ne_u32 vcc, 0, v{acc}")
        I(f"s_add_u32 s{t7}, s{t7}, 1")
        nop(3)
        I(f"s_cbranch_vccz L_c{ns}")
        I(f"s_cmp_lt_u32 s{t7}, 0x40000")
        if g.sleep_poll: I(f"s_sleep {g.sleep_poll}")
        I(f"s_cbranch_scc1 L_g{ns}")
        lab(f"L_c{ns}")
        g.stamp(8)
        vM = vX + 6
        I(f"v_max_f32 v{vM}, v{vA_M}, v{vGM}")
        for x in range(1, nsrc):
            I(f"v_max_f32 v{vM}, v{vM}, v{vGM+4*x}")
        I(f"v_sub_f32 v{vA_M}, v{vA_M}, v{vM}")
        for x in range(nsrc):
            I(f"v_sub_f32 v{vGM+4*x}, v{vGM+4*x}, v{vM}")
        I(f"v_exp_f32 v{vA_M}, v{vA_M}")
        for x in range(nsrc):
            I(f"v_exp_f32 v{vGM+4*x}, v{vGM+4*x}")
        nop(1)
        I(f"v_mul_f32 v{vA_L}, v{vA_L}, v{vA_M}")
        for r in range(4):
            I(f"v_mul_f32 v{vA_O+r}, v{vA_O+r}, v{vA_M}")
        for x in range(nsrc):
            I(f"v_fmac_f32 v{vA_L}, v{vGM+4*x+1}, v{vGM+4*x}")
            for r in range(4):
                I(f"v_fmac_f32 v{vA_O+r}, v{vGO+4*x+r}, v{vGM+4*x}")
        I("s_branch L_store1")
    lab("L_store1")
    I(f"v_rcp_f32 v{vA_L}, v{vA_L}")
    nop(1)
    for r in range(4):
        I(f"v_mul_f32 v{vA_O+r}, v{vA_O+r}, v{vA_L}")
    I(f"v_cvt_pk_bf16_f32 v{vA_O}, v{vA_O}, v{vA_O+1}")
    I(f"v_cvt_pk_bf16_f32 v{vA_O+1}, v{vA_O+2}, v{vA_O+3}")
    I(f"buffer_store_dwordx2 {vr(vA_O,2)}, v{vOO}, {sr(SO,4)}, 0 offen")
    I(f"s_or_b32 s{t0}, s{sJ}, s{sW}")
    I(f"s_cbranch_scc1 L_fin")
    I(f"s_lshl_b32 s{t0}, s{sH}, 5")
    I(f"s_lshl_b32 s{t1}, s{sB}, 2")
    I(f"s_add_u32 s{t0}, s{t0}, s{t1}")
    I(f"s_add_u32 s{t1}, s{sE}, 1")
    I(f"v_mov_b32 v{vX+8}, s{t1}")
    I(f"v_mov_b32 v{vX+9}, 0")
    I(f"s_mov_b64 exec, 1")
    I(f"buffer_store_dword v{vX+8}, v{vX+9}, {sr(SWS,4)}, s{t0} offen sc1")
    I(f"s_mov_b64 exec, -1")
    I("s_branch L_fin")
    lab("L_single")
    nop(4)
    for hq in range(2):
        I(f"v_rcp_f32 v{vX+hq}, v{vLs+4*hq}")
    nop(1)
    for hq in range(2):
        for r in range(4):
            I(f"v_mul_f32 v{vO+4*hq+r}, v{vO+4*hq+r}, v{vX+hq}")
        I(f"v_cvt_pk_bf16_f32 v{vO+4*hq}, v{vO+4*hq}, v{vO+4*hq+1}")
        I(f"v_cvt_pk_bf16_f32 v{vO+4*hq+1}, v{vO+4*hq+2}, v{vO+4*hq+3}")
    I(f"buffer_store_dwordx2 {vr(vO,2)}, v{vOO}, {sr(SO,4)}, 0 offen")
    I(f"v_add_u32 v{vOO}, 4096, v{vOO}")
    I(f"buffer_store_dwordx2 {vr(vO+4,2)}, v{vOO}, {sr(SO,4)}, 0 offen")
    lab("L_fin")
    if g.stamps == "dbg":
        g.stamp(9)
        I(f"s_load_dwordx2 {sr(t0)}, s[0:1], 48")
        I("s_waitcnt lgkmcnt(0)")
        I(f"s_cmp_lg_u32 s{sW}, 0")
        I("s_cbranch_scc1 L_end")
        I(f"s_mov_b64 exec, 1")
        I(f"v_mov_b32 v{vX+12}, 0")
        for n, k in enumerate((0, 2, 3, 4, 5, 6, 7, 9)):
            I(f"v_mov_b32 v{vX+10}, s{STB+2*k}")
            I(f"global_atomic_umax v{vX+12}, v{vX+10}, {sr(t0)} offset:{8*n}")
            I(f"s_not_b32 s{t2}, s{STB+2*k}")
            I(f"v_mov_b32 v{vX+11}, s{t2}")
            I(f"global_atomic_umax v{vX+12}, v{vX+11}, {sr(t0)} offset:{8*n+4}")
            nop(2)
    elif g.stamps:
        g.stamp(9)
        I("s_waitcnt lgkmcnt(0)")
        I(f"s_lshl_b32 s{t0}, s{sW}, 8")
        I(f"s_add_u32 s{t0}, s{t0}, s2")
        I(f"s_mul_i32 s{t0}, s{t0}, {g.nst*8}")
        I(f"s_add_u32 s{t0}, s{t0}, {STAMP_OFF}")
        I(f"s_add_u32 s{sWS}, s{sWS}, s{t0}")
        I(f"s_addc_u32 s{sWS+1}, s{sWS+1}, 0")
        I(f"v_mov_b32 v{vX+12}, 0")
        for k in range(g.nst):
            I(f"v_mov_b32 v{vX+10}, s{STB+2*k}")
            I(f"v_mov_b32 v{vX+11}, s{STB+2*k+1}")
            I(f"global_store_dwordx2 v{vX+12}, {vr(vX+10,2)}, {sr(sWS)} offset:{8*k}")
            nop(2)
    lab("L_end")
    I("s_endpgm")
    A('.section .rodata,"a"')
    A(".p2align 6")
    A(f".amdhsa_kernel {NAME}_kernel")
    A("  .amdhsa_next_free_vgpr 256")
    A("  .amdhsa_next_free_sgpr 102")
    A("  .amdhsa_accum_offset 256")
    A("  .amdhsa_group_segment_fixed_size 0")
    A("  .amdhsa_kernarg_size 64")
    A("  .amdhsa_user_sgpr_count 2")
    A("  .amdhsa_user_sgpr_kernarg_segment_ptr 1")
    A("  .amdhsa_system_sgpr_workgroup_id_x 1")
    A(".end_amdhsa_kernel")
    return "\n".join(x for x in g.L if x is not None) + "\n"

if __name__ == "__main__":
    open("k1.s", "w").write(gen())
    open("k1_st.s", "w").write(gen(stamps=True))
    open("k1_dbg.s", "w").write(gen(stamps="dbg"))
    open("k1_nont.s", "w").write(gen(nt=False))
    print("ok")
```

```python
import sys
NAME = "standalone__paged_block_table_kv_pagedattention__sampling"

XB = 131072
X_TAB = XB
X_Q = XB + 4096
X_MAX = XB + 12288
LDS_BYTES = 163840
WS_EPOCH = 0
WS_ML = 4096
WS_O = 1 << 20
WS_USED = 8 << 20
STAMP_OFF = 128 << 20
KV_BYTES = 1028 * 16 * 8 * 128 * 2

class Gen:
    def __init__(self, stamps=False, nt=True, dump=None, sleep_poll=0):
        self.L = []
        self.stamps = stamps
        self.ntf = " nt" if nt else ""
        self.dump = dump
        self.nst = 0
        self.uid = 0
        self.sleep_poll = sleep_poll
    def A(self, s): self.L.append(s)
    def I(self, s): self.L.append("  " + s)
    def lab(self, s): self.L.append(s + ":")
    def nop(self, n):
        while n > 0:
            k = min(n, 16)
            self.I(f"s_nop {k-1}")
            n -= k
    def newlab(self, p):
        self.uid += 1
        return f"L_{p}_{self.uid}"
    def stamp(self, k):
        if self.stamps:
            self.I(f"s_memrealtime s[{STB+2*k}:{STB+2*k+1}]")
            self.nst = max(self.nst, k + 1)

sQ, sK, sV, sBT, sCLp, sOUT, sWS = 4, 6, 8, 10, 12, 14, 16
sW, sH, sSlot, sB, sJ, sN = 18, 19, 20, 21, 22, 23
SK, SV, SQ, ST, SO, SWS = 24, 28, 32, 36, 40, 44
sNB, sCL, sCNT, sNV, sE, sCs, sG0 = 48, 49, 50, 51, 52, 53, 54
sBlk = 55
sH256 = 59
sP = 60
sT0, sT1 = 64, 65
sNST = 66
sNSTEP = 67
sGB = 68
t0, t1, t2, t3, t4, t5, t6, t7 = 70, 71, 72, 73, 74, 75, 76, 77
STB = 80
vLane, vI, vG = 0, 1, 2
vKD = 4
vVD = 8
vKA = 12
vPW = 16
vPR = 17
vVR = 21
vNEG = 23
vG4 = 24
vMC = 25
vL16 = 27
vT = 28
vQF = 32
vKF = 64
vS = 80
vPF = 112
vVF = 32
vO = 48
vLs = 56
vONE = 64
vX = 240

def sr(a, n=2): return f"s[{a}:{a+n-1}]"
def vr(a, n): return f"v[{a}:{a+n-1}]"

def gen(stamps=False, nt=True, dump=None, sleep_poll=0, pad=0):
    g = Gen(stamps, nt, dump, sleep_poll)
    A, I, lab, nop = g.A, g.I, g.lab, g.nop
    ntf = g.ntf
    A(f"; @launch grid=(256,1,1) block=(512,1,1) lds={LDS_BYTES}")
    A('.amdgcn_target "amdgcn-amd-amdhsa--gfx950"')
    A(".text")
    A(f".globl {NAME}_kernel")
    A(".p2align 8")
    A(f".type {NAME}_kernel,@function")
    A(f"{NAME}_kernel:")
    I("s_cmp_ge_u32 s2, 256")
    I("s_cbranch_scc1 L_end")
    g.stamp(0)
    if pad: I("s_memrealtime s[100:101]")
    if g.stamps: I(f"s_mov_b64 s[{STB+16}:{STB+17}], 0")
    I(f"s_load_dwordx8 s[4:11], s[0:1], 0")
    I(f"s_load_dwordx4 s[12:15], s[0:1], 32")
    I(f"s_load_dwordx2 s[16:17], s[0:1], 56")
    I(f"v_lshrrev_b32 v{vT}, 6, v0")
    I(f"v_and_b32 v{vLane}, 63, v0")
    I(f"s_and_b32 s{sH}, s2, 7")
    I(f"v_readfirstlane_b32 s{sW}, v{vT}")
    I(f"s_lshr_b32 s{sSlot}, s2, 3")
    I(f"v_and_b32 v{vI}, 15, v{vLane}")
    I(f"v_lshrrev_b32 v{vG}, 4, v{vLane}")
    I(f"v_lshlrev_b32 v{vL16}, 4, v{vLane}")
    vR, vAR = vX, vX + 4
    I(f"v_lshlrev_b32 v{vG4}, 2, v{vG}")
    I(f"v_add_u32 v{vT}, 17, v{vG4}")
    I(f"v_cvt_f32_u32 v{vT}, v{vT}")
    I(f"v_add_f32 v{vT+1}, 1.0, v{vT}")
    I(f"v_add_f32 v{vT+2}, 2.0, v{vT}")
    I(f"v_add_f32 v{vT+3}, 1.0, v{vT+2}")
    for f in range(4):
        I(f"v_rcp_f32 v{vR+f}, v{vT+f}")
    vOC, vOE, vM8 = vX + 8, vX + 9, vX + 10
    I(f"v_and_b32 v{vOC}, 7, v{vLane}")
    I(f"v_lshlrev_b32 v{vOC}, 2, v{vOC}")
    I(f"s_lshl_b32 s{t0}, s{sH}, 5")
    I(f"v_add_u32 v{vOE}, s{t0}, v{vOC}")
    I(f"v_cmp_gt_u32 vcc, 8, v{vI}")
    for f in range(4):
        I(f"v_fma_f32 v{vAR+f}, v{vR+f}, -0.5, 1.0")
    I(f"v_cndmask_b32 v{vM8}, 0, -1, vcc")
    vTO = vX + 11
    I(f"s_lshl_b32 s{t1}, s{sW}, 10")
    I(f"v_add_u32 v{vTO}, s{t1}, v{vL16}")
    I(f"s_add_u32 s{t1}, s{t1}, {X_TAB}")
    I(f"s_mov_b32 m0, s{t1}")
    I(f"s_lshl_b32 s{sH256}, s{sH}, 8")
    I(f"s_mov_b32 s{ST+2}, 4096")
    I(f"s_mov_b32 s{ST+3}, 0x20000")
    I("s_waitcnt lgkmcnt(0)")
    g.stamp(1)
    vCL, vE = vX + 12, vX + 13
    I(f"global_load_dword v{vCL}, v{vOC}, {sr(sCLp)}")
    I(f"global_load_dword v{vE}, v{vOE}, {sr(sWS)} sc1")
    I(f"s_mov_b32 s{ST}, s{sBT}")
    I(f"s_and_b32 s{ST+1}, s{sBT+1}, 0xffff")
    I(f"s_cmp_ge_u32 s{sW}, 4")
    I(f"s_cbranch_scc1 L_notab")
    I(f"buffer_load_dwordx4 v{vTO}, {sr(ST,4)}, 0 offen lds")
    lab("L_notab")
    for (S, p, nbytes) in ((SK, sK, KV_BYTES), (SV, sV, KV_BYTES), (SQ, sQ, 524288), (SO, sOUT, 524288), (SWS, sWS, WS_USED)):
        I(f"s_mov_b32 s{S}, s{p}")
        I(f"s_and_b32 s{S+1}, s{p+1}, 0xffff")
        I(f"s_mov_b32 s{S+2}, {nbytes}")
        I(f"s_mov_b32 s{S+3}, 0x20000")
    for jj in range(4):
        I(f"v_add_u32 v{vT}, {4*jj}, v{vG}")
        I(f"v_xor_b32 v{vT+1}, v{vT}, v{vI}")
        I(f"v_lshlrev_b32 v{vT+1}, 4, v{vT+1}")
        I(f"v_lshl_add_u32 v{vT+1}, v{vT}, 11, v{vT+1}")
        if jj: I(f"v_subrev_u32 v{vKD+jj}, {jj*1024}, v{vT+1}")
        else:  I(f"v_mov_b32 v{vKD}, v{vT+1}")
    for jj in range(4):
        I(f"v_add_u32 v{vT}, {4*jj}, v{vG}")
        I(f"v_lshlrev_b32 v{vT+1}, 1, v{vG}")
        if jj >> 1: I(f"v_or_b32 v{vT+1}, 8, v{vT+1}")
        I(f"v_xor_b32 v{vT+1}, v{vT+1}, v{vI}")
        I(f"v_lshlrev_b32 v{vT+1}, 4, v{vT+1}")
        I(f"v_lshl_add_u32 v{vT+1}, v{vT}, 11, v{vT+1}")
        if jj: I(f"v_subrev_u32 v{vVD+jj}, {jj*1024}, v{vT+1}")
        else:  I(f"v_mov_b32 v{vVD}, v{vT+1}")
    I(f"s_lshl_b32 s{t0}, s{sW}, 12")
    for s in range(4):
        I(f"v_add_u32 v{vT}, {4*s}, v{vG}")
        I(f"v_xor_b32 v{vT}, v{vT}, v{vI}")
        I(f"v_lshlrev_b32 v{vT}, 4, v{vT}")
        I(f"v_lshl_add_u32 v{vT}, v{vI}, 8, v{vT}")
        I(f"v_add_u32 v{vKA+s}, s{t0}, v{vT}")
    vQD = vX + 14
    I(f"s_lshl_b32 s{t1}, s{sW}, 2")
    I(f"v_add_u32 v{vT}, s{t1}, v{vG}")
    I(f"v_and_b32 v{vT+1}, 15, v{vT}")
    I(f"v_xor_b32 v{vT+1}, v{vT+1}, v{vI}")
    I(f"v_lshlrev_b32 v{vT+1}, 4, v{vT+1}")
    I(f"v_lshl_add_u32 v{vQD}, v{vT}, 8, v{vT+1}")
    I(f"v_mov_b32 v{vNEG}, 0xff800000")
    I(f"v_mov_b32 v{vT+3}, 0x800")
    vTINY = vKF
    I(f"v_mov_b32 v{vTINY}, 0x0da24260")
    I("s_waitcnt vmcnt(0)")
    g.stamp(2)
    vNB, vCS, vNP, vPP = vX + 15, vT, vT + 1, vT + 2
    import struct, math
    cbits = struct.unpack("<I", struct.pack("<f", (128 ** -0.5) * math.log2(math.e)))[0]
    I(f"v_cmp_gt_i32 vcc, 1, v{vCL}")
    I(f"v_min_i32 v{vCL}, 0x800, v{vCL}")
    I(f"v_mov_b32 v{vCS}, 0x{cbits:08x}")
    I(f"v_cndmask_b32 v{vCL}, v{vCL}, v{vT+3}, vcc")
    I(f"v_cndmask_b32 v{vCS}, v{vCS}, v{vTINY}, vcc")
    I(f"v_add_u32 v{vNB}, 15, v{vCL}")
    I(f"v_lshrrev_b32 v{vNB}, 4, v{vNB}")
    I(f"v_and_b32 v{vNB}, v{vNB}, v{vM8}")
    I(f"v_cvt_f32_u32 v{vT+3}, v{vNB}")
    for f in range(4):
        I(f"v_fma_f32 v{vR+f}, v{vT+3}, v{vR+f}, v{vAR+f}")
    for f in range(4):
        I(f"v_cvt_u32_f32 v{vR+f}, v{vR+f}")
    I(f"v_lshl_or_b32 v{vR}, v{vR+1}, 8, v{vR}")
    I(f"v_lshl_or_b32 v{vR+2}, v{vR+3}, 8, v{vR+2}")
    I(f"v_lshl_or_b32 v{vNP}, v{vR+2}, 16, v{vR}")
    nop(2)
    I(f"v_add_u32_dpp v{vPP}, v{vNP}, v{vNP} row_shr:1 row_mask:0xf bank_mask:0xf bound_ctrl:0")
    nop(2)
    I(f"v_add_u32_dpp v{vPP}, v{vPP}, v{vPP} row_shr:2 row_mask:0xf bank_mask:0xf bound_ctrl:0")
    nop(2)
    I(f"v_add_u32_dpp v{vPP}, v{vPP}, v{vPP} row_shr:4 row_mask:0xf bank_mask:0xf bound_ctrl:0")
    I(f"v_add_u32 v{vR}, 0x5f5f5f5f, v{vPP}")
    I(f"v_and_b32 v{vR}, 0x80808080, v{vR}")
    I(f"v_bcnt_u32_b32 v{vR}, v{vR}, 0")
    nop(1)
    I(f"v_readlane_b32 s{t0}, v{vR}, 7")
    I(f"v_readlane_b32 s{t1}, v{vR}, 23")
    I(f"v_readlane_b32 s{t2}, v{vR}, 39")
    I(f"v_readlane_b32 s{t3}, v{vR}, 55")
    I(f"s_add_u32 s{t0}, s{t0}, s{t1}")
    I(f"s_add_u32 s{t2}, s{t2}, s{t3}")
    I(f"s_add_u32 s{t0}, s{t0}, s{t2}")
    I(f"s_and_b32 s{t1}, s{t0}, 3")
    I(f"s_lshl_b32 s{t1}, s{t1}, 3")
    I(f"s_lshr_b32 s{t2}, s{t0}, 2")
    I(f"s_lshl_b32 s{t2}, s{t2}, 4")
    I(f"v_bfe_u32 v{vPP}, v{vPP}, s{t1}, 8")
    I(f"v_bfe_u32 v{vNP}, v{vNP}, s{t1}, 8")
    I(f"v_cmp_lt_u32 vcc, s{sSlot}, v{vPP}")
    nop(2)
    I(f"s_lshr_b64 {sr(t4)}, vcc, s{t2}")
    I(f"s_and_b32 s{t4}, s{t4}, 0xff")
    I(f"s_cbranch_scc0 L_end")
    I(f"s_ff1_i32_b32 s{sB}, s{t4}")
    I(f"s_add_u32 s{t2}, s{t2}, s{sB}")
    I(f"v_readlane_b32 s{sN}, v{vNP}, s{t2}")
    I(f"v_readlane_b32 s{sG0}, v{vPP}, s{t2}")
    I(f"v_readlane_b32 s{sNB}, v{vNB}, s{t2}")
    I(f"v_readlane_b32 s{sCL}, v{vCL}, s{t2}")
    I(f"v_readlane_b32 s{sE}, v{vE}, s{t2}")
    I(f"v_readlane_b32 s{sCs}, v{vCS}, s{t2}")
    I(f"s_sub_u32 s{sG0}, s{sG0}, s{sN}")
    I(f"s_sub_u32 s{sJ}, s{sSlot}, s{sG0}")
    I(f"s_lshl_b32 s{t0}, s{sB}, 9")
    I(f"s_add_u32 s{t0}, s{t0}, {X_TAB}")
    I(f"v_mul_u32_u24 v{vT}, s{sN}, v{vLane}")
    I(f"v_add_u32 v{vT}, s{sJ}, v{vT}")
    I(f"v_cmp_gt_u32 vcc, s{sNB}, v{vT}")
    I(f"v_min_u32 v{vT}, 127, v{vT}")
    I(f"v_lshl_add_u32 v{vT}, v{vT}, 2, s{t0}")
    I("s_barrier")
    I(f"ds_read_b32 v{vT+1}, v{vT}")
    I(f"s_bcnt1_i32_b32 s{sCNT}, vcc_lo")
    I(f"s_sub_u32 s{sNV}, s{sCNT}, s{sW}")
    I(f"s_add_u32 s{sNV}, s{sNV}, 7")
    I(f"s_ashr_i32 s{sNV}, s{sNV}, 3")
    I(f"s_add_u32 s{sNST}, s{sCNT}, 7")
    I(f"s_lshr_b32 s{sNST}, s{sNST}, 3")
    I(f"s_add_u32 s{sNSTEP}, s{sCNT}, 1")
    I(f"s_lshr_b32 s{sNSTEP}, s{sNSTEP}, 1")
    I(f"s_lshl_b32 s{t1}, s{sB}, 16")
    I(f"s_lshl_b32 s{t2}, s{sH}, 13")
    I(f"s_add_u32 s{t1}, s{t1}, s{t2}")
    I(f"s_lshl_b32 s{t2}, s{sW}, 10")
    I(f"s_add_u32 s{t2}, s{t2}, {X_Q}")
    I(f"s_mov_b32 m0, s{t2}")
    I(f"s_mul_i32 s{sGB}, s{sN}, s{sW}")
    I(f"s_add_u32 s{sGB}, s{sGB}, s{sJ}")
    I(f"buffer_load_dwordx4 v{vQD}, {sr(SQ,4)}, s{t1} offen lds")
    I(f"s_add_u32 s{t3}, s{sW}, 8")
    I(f"s_add_u32 s{t4}, s{sW}, 16")
    I(f"s_add_u32 s{t5}, s{sW}, 24")
    I("s_waitcnt lgkmcnt(0)")
    I(f"v_lshl_add_u32 v{vT+1}, v{vT+1}, 15, s{sH256}")
    I(f"s_lshl_b32 s{t6}, s{sW}, 12")
    I(f"s_mov_b32 m0, s{t6}")
    I(f"v_readlane_b32 s{sBlk}, v{vT+1}, s{sW}")
    I(f"v_readlane_b32 s{sBlk+1}, v{vT+1}, s{t3}")
    I(f"v_readlane_b32 s{sBlk+2}, v{vT+1}, s{t4}")
    I(f"v_readlane_b32 s{sBlk+3}, v{vT+1}, s{t5}")
    g.stamp(3)
    nop(4)
    def dma_block(voff, srd, k):
        for jj in range(4):
            I(f"buffer_load_dwordx4 v{voff+jj}, {sr(srd,4)}, s{sBlk+k} offen offset:{jj*1024}{ntf} lds")
    def set_m0(k):
        if k: I(f"s_add_u32 s{t0}, s{t6}, {k*32768}")
        I(f"s_mov_b32 m0, s{t0 if k else t6}")
        I("s_nop 0")
    for n in (4, 3, 2, 1):
        I(f"s_cmp_ge_i32 s{sNV}, {n}")
        I(f"s_cbranch_scc1 L_k{n}")
    I("s_branch L_k0")
    def q_frags():
        I(f"s_sub_u32 s{t0}, {X_Q}, s{t6}")
        for s in range(4):
            I(f"v_add_u32 v{vT+s}, s{t0}, v{vKA+s}")
        I("s_barrier")
        for hq in range(2):
            for s in range(4):
                I(f"ds_read_b128 {vr(vQF+16*hq+4*s,4)}, v{vT+s} offset:{hq*4096}")
    for n in (4, 3, 2, 1, 0):
        lab(f"L_k{n}")
        for k in range(n):
            if k: set_m0(k)
            dma_block(vKD, SK, k)
        I(f"s_waitcnt vmcnt({4*n})")
        q_frags()
        for k in range(n):
            if k == 2:
                for s in range(4): I(f"v_add_u32 v{vKA+s}, 0x10000, v{vKA+s}")
            I(f"s_waitcnt vmcnt({4*(n-1)})")
            for s in range(4):
                I(f"ds_read_b128 {vr(vKF+4*s,4)}, v{vKA+s} offset:{(k&1)*32768}")
            set_m0(k)
            I("s_waitcnt lgkmcnt(0)")
            dma_block(vVD, SV, k)
            for hq in range(2):
                for s in range(4):
                    c = "0" if s == 0 else vr(vS+8*k+4*hq, 4)
                    I(f"v_mfma_f32_16x16x32_bf16 {vr(vS+8*k+4*hq,4)}, {vr(vKF+4*s,4)}, {vr(vQF+16*hq+4*s,4)}, {c}")
        if n == 0: I("s_waitcnt lgkmcnt(0)")
        if n: I("s_branch L_kdone")
    lab("L_kdone")
    I(f"s_bitcmp1_b32 s{sCNT}, 0")
    I(f"s_cbranch_scc0 L_nozero")
    I(f"s_and_b32 s{t0}, s{sCNT}, 7")
    I(f"s_cmp_lg_u32 s{t0}, s{sW}")
    I(f"s_cbranch_scc1 L_nozero")
    I(f"s_lshl_b32 s{t0}, s{sCNT}, 12")
    I(f"v_add_u32 v{vT}, s{t0}, v{vL16}")
    for x in range(4): I(f"v_mov_b32 v{vX+x}, 0")
    for x in range(4): I(f"ds_write_b128 v{vT}, {vr(vX,4)} offset:{x*1024}")
    lab("L_nozero")
    I(f"s_lshl_b32 s{t0}, s{sW}, 1")
    I(f"v_lshrrev_b32 v{vT}, 1, v{vG}")
    I(f"v_add_u32 v{vT}, s{t0}, v{vT}")
    I(f"v_xor_b32 v{vT}, v{vT}, v{vI}")
    I(f"v_lshlrev_b32 v{vT}, 4, v{vT}")
    I(f"v_lshl_add_u32 v{vT}, v{vI}, 10, v{vT}")
    I(f"v_and_b32 v{vT+1}, 1, v{vG}")
    I(f"v_lshl_add_u32 v{vT}, v{vT+1}, 3, v{vT}")
    I(f"v_add_u32 v{vPW}, {XB}, v{vT}")
    for u in range(4):
        I(f"v_add_u32 v{vT}, {4*u}, v{vG}")
        I(f"v_xor_b32 v{vT}, v{vT}, v{vI}")
        I(f"v_lshlrev_b32 v{vT}, 4, v{vT}")
        I(f"v_lshl_add_u32 v{vT}, v{vI}, 10, v{vT}")
        I(f"v_add_u32 v{vPR+u}, {XB}, v{vT}")
    I(f"v_lshrrev_b32 v{vT}, 2, v{vI}")
    I(f"v_and_b32 v{vT+1}, 1, v{vG}")
    I(f"v_lshl_add_u32 v{vT+2}, v{vT+1}, 2, v{vT}")
    I(f"v_lshl_add_u32 v{vT+3}, v{vT+1}, 3, v{vT}")
    I(f"v_lshlrev_b32 v{vT+2}, 1, v{vT+2}")
    I(f"v_bfe_u32 v{vT}, v{vI}, 1, 1")
    I(f"s_lshl_b32 s{t0}, s{sW}, 1")
    I(f"v_add_u32 v{vT}, s{t0}, v{vT}")
    I(f"v_xor_b32 v{vT}, v{vT}, v{vT+2}")
    I(f"v_lshlrev_b32 v{vT}, 4, v{vT}")
    I(f"v_lshl_add_u32 v{vT}, v{vT+3}, 8, v{vT}")
    I(f"v_and_b32 v{vT+1}, 1, v{vI}")
    I(f"v_lshl_add_u32 v{vT}, v{vT+1}, 3, v{vT}")
    I(f"v_lshrrev_b32 v{vT+1}, 1, v{vG}")
    I(f"v_lshl_add_u32 v{vVR}, v{vT+1}, 12, v{vT}")
    I(f"v_add_u32 v{vVR+1}, 0x10000, v{vVR}")
    for k in range(4):
        l = g.newlab("nomask")
        I(f"s_mul_i32 s{t0}, s{sN}, {8*k}")
        I(f"s_add_u32 s{t0}, s{t0}, s{sGB}")
        I(f"s_lshl_b32 s{t0}, s{t0}, 4")
        I(f"s_sub_i32 s{t0}, s{sCL}, s{t0}")
        I(f"s_cmp_ge_i32 s{t0}, 16")
        I(f"s_cbranch_scc1 {l}")
        nop(8)
        for r in range(4):
            I(f"s_sub_i32 s{t1}, s{t0}, {r}")
            I(f"v_cmp_le_i32 vcc, s{t1}, v{vG4}")
            nop(2)
            for hq in range(2):
                x = vS + 8*k + 4*hq + r
                I(f"v_cndmask_b32 v{x}, v{x}, v{vNEG}, vcc")
        lab(l)
    nop(8)
    for hq in range(2):
        xs = [vS + 8*k + 4*hq + r for k in range(4) for r in range(4)]
        d = vX + hq
        I(f"v_max3_f32 v{d}, v{xs[0]}, v{xs[1]}, v{xs[2]}")
        rest = xs[3:]
        while len(rest) >= 2:
            I(f"v_max3_f32 v{d}, v{d}, v{rest[0]}, v{rest[1]}"); rest = rest[2:]
        if rest: I(f"v_max_f32 v{d}, v{d}, v{rest[0]}")
    for perm in ("v_permlane32_swap_b32", "v_permlane16_swap_b32"):
        I(f"v_mov_b32 v{vX+2}, v{vX}")
        I(f"v_mov_b32 v{vX+3}, v{vX+1}")
        nop(2)
        I(f"{perm} v{vX}, v{vX+2}")
        I(f"{perm} v{vX+1}, v{vX+3}")
        nop(1)
        I(f"v_max_f32 v{vX}, v{vX}, v{vX+2}")
        I(f"v_max_f32 v{vX+1}, v{vX+1}, v{vX+3}")
    I(f"s_lshl_b32 s{t0}, s{sW}, 2")
    I(f"s_add_u32 s{t0}, s{t0}, {X_MAX}")
    I(f"v_lshl_add_u32 v{vT}, v{vI}, 5, s{t0}")
    I(f"ds_write_b32 v{vT}, v{vX}")
    I(f"ds_write_b32 v{vT}, v{vX+1} offset:512")
    I(f"v_lshlrev_b32 v{vT+1}, 5, v{vI}")
    I(f"v_add_u32 v{vT+1}, {X_MAX}, v{vT+1}")
    I("s_waitcnt lgkmcnt(0)")
    I("s_barrier")
    g.stamp(4)
    for hq in range(2):
        I(f"ds_read_b128 {vr(vX+8*hq,4)}, v{vT+1} offset:{hq*512}")
        I(f"ds_read_b128 {vr(vX+8*hq+4,4)}, v{vT+1} offset:{hq*512+16}")
    I("s_waitcnt lgkmcnt(0)")
    I("s_barrier")
    for hq in range(2):
        b = vX + 8*hq
        I(f"v_max3_f32 v{b}, v{b}, v{b+1}, v{b+2}")
        I(f"v_max3_f32 v{b+3}, v{b+3}, v{b+4}, v{b+5}")
        I(f"v_max3_f32 v{b}, v{b}, v{b+6}, v{b+7}")
        I(f"v_max_f32 v{b}, v{b}, v{b+3}")
        I(f"v_mul_f32 v{vMC+hq}, s{sCs}, v{b}")
    for k in range(4):
        for hq in range(2):
            b = vS + 8*k + 4*hq
            for r in range(4):
                I(f"v_fma_f32 v{b+r}, v{b+r}, s{sCs}, -v{vMC+hq}")
            for r in range(4):
                I(f"v_exp_f32 v{b+r}, v{b+r}")
            nop(1)
            I(f"v_cvt_pk_bf16_f32 v{b}, v{b}, v{b+1}")
            I(f"v_cvt_pk_bf16_f32 v{b+1}, v{b+2}, v{b+3}")
            I(f"ds_write_b64 v{vPW}, {vr(b,2)} offset:{hq*16384 + k*256}")
    for x in range(4): I(f"v_mov_b32 v{vONE+x}, 0x3f803f80")
    I("s_waitcnt lgkmcnt(0)")
    I("s_barrier")
    for s in range(4):
        if s:
            I(f"s_cmp_le_u32 s{sNST}, {s}")
            I(f"s_cbranch_scc1 L_pdone")
        for u in range(4):
            t = 4*s + u
            for hq in range(2):
                I(f"ds_read_b128 {vr(vPF+8*t+4*hq,4)}, v{vPR+u} offset:{hq*16384 + s*256}")
        I("s_waitcnt lgkmcnt(0)")
        for u in range(4):
            t = 4*s + u
            for hq in range(2):
                c = "0" if t == 0 else vr(vLs+4*hq, 4)
                I(f"v_mfma_f32_16x16x32_bf16 {vr(vLs+4*hq,4)}, {vr(vONE,4)}, {vr(vPF+8*t+4*hq,4)}, {c}")
    lab("L_pdone")
    g.stamp(5)
    for s in range(4):
        if s:
            I(f"s_cmp_le_u32 s{sNST}, {s}")
            I(f"s_cbranch_scc1 L_pvdone")
        lw = g.newlab("vw")
        I(f"s_sub_i32 s{t0}, s{sNV}, {s+1}")
        for r in (3, 2, 1):
            if r > 3 - s: continue
            l = g.newlab("vw")
            I(f"s_cmp_lt_i32 s{t0}, {r}")
            I(f"s_cbranch_scc1 {l}")
            I(f"s_waitcnt vmcnt({4*r})")
            I(f"s_branch {lw}")
            lab(l)
        I("s_waitcnt vmcnt(0)")
        lab(lw)
        I("s_barrier")
        if True:
            pass
        ldone = g.newlab("st")
        lpart = g.newlab("part")
        I(f"s_cmp_lt_u32 s{sNSTEP}, {4*s+4}")
        I(f"s_cbranch_scc1 {lpart}")
        def reads(u):
            t = 4*s + u
            base = vVR + (t >> 3)
            I(f"ds_read_b64_tr_b16 {vr(vVF+4*u,2)}, v{base} offset:{(t&7)*8192}")
            I(f"ds_read_b64_tr_b16 {vr(vVF+4*u+2,2)}, v{base} offset:{(t&7)*8192+1024}")
        def mfmas(u):
            t = 4*s + u
            for hq in range(2):
                c = "0" if t == 0 else vr(vO+4*hq, 4)
                I(f"v_mfma_f32_16x16x32_bf16 {vr(vO+4*hq,4)}, {vr(vVF+4*u,4)}, {vr(vPF+8*t+4*hq,4)}, {c}")
        for u in range(4): reads(u)
        for u in range(4):
            I(f"s_waitcnt lgkmcnt({2*(3-u)})")
            mfmas(u)
        I(f"s_branch {ldone}")
        lab(lpart)
        for u in range(3):
            if u:
                I(f"s_cmp_le_u32 s{sNSTEP}, {4*s+u}")
                I(f"s_cbranch_scc1 {ldone}")
            reads(u)
            I("s_waitcnt lgkmcnt(0)")
            mfmas(u)
        lab(ldone)
    lab("L_pvdone")
    g.stamp(6)
    I(f"s_lshl_b32 s{t0}, s{sE}, 3")
    I(f"s_or_b32 s{t0}, s{t0}, s{sB}")
    I(f"s_mul_i32 s{sT0}, s{t0}, 0x9e3779b1")
    I(f"s_add_u32 s{sT0}, s{sT0}, 0x85ebca6b")
    I(f"s_mul_i32 s{sT1}, s{t0}, 0xc2b2ae35")
    I(f"s_add_u32 s{sT1}, s{sT1}, 0x27d4eb2f")
    I(f"s_and_b32 s{sP}, s{sT0}, 0xfff")
    I(f"s_bfe_u32 s{sP+1}, s{sT0}, 0xc000c")
    I(f"s_lshr_b32 s{sP+2}, s{sT0}, 24")
    I(f"s_lshl_b32 s{t1}, s{sT1}, 8")
    I(f"s_and_b32 s{t1}, s{t1}, 0xf00")
    I(f"s_or_b32 s{sP+2}, s{sP+2}, s{t1}")
    I(f"s_bfe_u32 s{sP+3}, s{sT1}, 0xc0004")
    vOO = vT
    I(f"s_lshl_b32 s{t0}, s{sB}, 16")
    I(f"s_lshl_b32 s{t1}, s{sH}, 13")
    I(f"s_add_u32 s{t0}, s{t0}, s{t1}")
    I(f"s_lshl_b32 s{t1}, s{sW}, 5")
    I(f"s_add_u32 s{t0}, s{t0}, s{t1}")
    I(f"v_lshlrev_b32 v{vOO}, 8, v{vI}")
    I(f"v_lshl_add_u32 v{vOO}, v{vG}, 3, v{vOO}")
    I(f"v_add_u32 v{vOO}, s{t0}, v{vOO}")
    I(f"s_cmp_eq_u32 s{sN}, 1")
    I(f"s_cbranch_scc1 L_single")
    sOw0, sOw1, sMe = t2, t3, t4
    I(f"s_mul_i32 s{sOw0}, s{sW}, s{sN}")
    I(f"s_lshl_b32 s{t1}, s{sN}, 3")
    I(f"s_add_u32 s{sOw1}, s{sOw0}, s{t1}")
    I(f"s_lshr_b32 s{sOw0}, s{sOw0}, 4")
    I(f"s_lshr_b32 s{sOw1}, s{sOw1}, 4")
    I(f"s_lshl_b32 s{t5}, s2, 14")
    I(f"s_lshl_b32 s{t1}, s{sW}, 10")
    I(f"s_add_u32 s{t5}, s{t5}, s{t1}")
    I(f"s_add_u32 s{t5}, s{t5}, {WS_O}")
    I(f"v_mov_b32 v{vT+1}, 0xfffff000")
    nop(2)
    for hq, own in ((0, sOw0), (1, sOw1)):
        l = g.newlab("nopub")
        I(f"s_cmp_eq_u32 s{own}, s{sJ}")
        I(f"s_cbranch_scc1 {l}")
        for r in range(4):
            I(f"v_and_b32 v{vX+4*hq+r}, v{vO+4*hq+r}, v{vT+1}")
        for r in range(4):
            I(f"v_or_b32 v{vX+4*hq+r}, s{sP+r}, v{vX+4*hq+r}")
        I(f"buffer_store_dwordx4 {vr(vX+4*hq,4)}, v{vL16}, {sr(SWS,4)}, s{t5} offen offset:0 sc1") if hq == 0 else None
        if hq == 1:
            I(f"s_add_u32 s{t1}, s{t5}, 8192")
            I(f"buffer_store_dwordx4 {vr(vX+4,4)}, v{vL16}, {sr(SWS,4)}, s{t1} offen sc1")
        lab(l)
    I(f"s_cmp_lg_u32 s{sW}, 0")
    I(f"s_cbranch_scc1 L_noml")
    I(f"s_lshl_b32 s{t1}, s2, 9")
    I(f"s_add_u32 s{t1}, s{t1}, {WS_ML}")
    I(f"s_mov_b64 exec, 0xffff")
    for hq in range(2):
        b = vX + 8 + 4*hq
        I(f"v_mov_b32 v{b}, v{vMC+hq}")
        I(f"v_mov_b32 v{b+1}, v{vLs+4*hq}")
        I(f"v_mov_b32 v{b+2}, s{sT0}")
        I(f"v_mov_b32 v{b+3}, s{sT1}")
        I(f"buffer_store_dwordx4 {vr(b,4)}, v{vL16}, {sr(SWS,4)}, s{t1} offen offset:{hq*256} sc1")
    I(f"s_mov_b64 exec, -1")
    lab("L_noml")
    g.stamp(7)
    I(f"s_cmp_eq_u32 s{sOw0}, s{sJ}")
    I(f"s_cbranch_scc1 L_own0")
    I(f"s_cmp_eq_u32 s{sOw1}, s{sJ}")
    I(f"s_cbranch_scc0 L_fin")
    vA_O, vA_M, vA_L = vX, vX + 4, vX + 5
    for r in range(4): I(f"v_mov_b32 v{vA_O+r}, v{vO+4+r}")
    I(f"v_mov_b32 v{vA_M}, v{vMC+1}")
    I(f"v_mov_b32 v{vA_L}, v{vLs+4}")
    I(f"s_mov_b32 s{t6}, 1")
    I(f"s_branch L_gather")
    lab("L_own0")
    for r in range(4): I(f"v_mov_b32 v{vA_O+r}, v{vO+r}")
    I(f"v_mov_b32 v{vA_M}, v{vMC}")
    I(f"v_mov_b32 v{vA_L}, v{vLs}")
    I(f"s_mov_b32 s{t6}, 0")
    lab("L_gather")
    sBO, sBM = t0, t1
    I(f"s_lshl_b32 s{t2}, s{sG0}, 3")
    I(f"s_add_u32 s{t2}, s{t2}, s{sH}")
    I(f"s_lshl_b32 s{sBO}, s{t2}, 14")
    I(f"s_lshl_b32 s{t3}, s{t6}, 13")
    I(f"s_add_u32 s{sBO}, s{sBO}, s{t3}")
    I(f"s_lshl_b32 s{t3}, s{sW}, 10")
    I(f"s_add_u32 s{sBO}, s{sBO}, s{t3}")
    I(f"s_add_u32 s{sBO}, s{sBO}, {WS_O}")
    I(f"s_lshl_b32 s{sBM}, s{t2}, 9")
    I(f"s_lshl_b32 s{t3}, s{t6}, 8")
    I(f"s_add_u32 s{sBM}, s{sBM}, s{t3}")
    I(f"s_add_u32 s{sBM}, s{sBM}, {WS_ML}")
    I(f"v_lshlrev_b32 v{vT+2}, 4, v{vI}")
    I(f"s_lshl_b32 s{t3}, s{t6}, 12")
    I(f"v_add_u32 v{vOO}, s{t3}, v{vOO}")
    sSO, sSM = 24, 32
    for x in range(7):
        I(f"s_cmp_le_u32 s{sJ}, {x}")
        I(f"s_cselect_b32 s{t2}, {x+1}, {x}")
        I(f"s_lshl_b32 s{t3}, s{t2}, 17")
        I(f"s_add_u32 s{sSO+x}, s{sBO}, s{t3}")
        I(f"s_lshl_b32 s{t3}, s{t2}, 12")
        I(f"s_add_u32 s{sSM+x}, s{sBM}, s{t3}")
    I(f"s_mov_b32 s{t7}, 0")
    I(f"v_mov_b32 v{vT+3}, 0xfff")
    for ns in range(2, 9):
        I(f"s_cmp_eq_u32 s{sN}, {ns}")
        I(f"s_cbranch_scc1 L_g{ns}")
    I("s_branch L_fin")
    vGO, vGM = vPF, vPF + 32
    for ns in range(2, 9):
        nsrc = ns - 1
        lab(f"L_g{ns}")
        for x in range(nsrc):
            I(f"buffer_load_dwordx4 {vr(vGO+4*x,4)}, v{vL16}, {sr(SWS,4)}, s{sSO+x} offen sc1")
            I(f"buffer_load_dwordx4 {vr(vGM+4*x,4)}, v{vT+2}, {sr(SWS,4)}, s{sSM+x} offen sc1")
        I("s_waitcnt vmcnt(0)")
        acc, accm = vX + 6, vX + 7
        for x in range(nsrc):
            for r in range(4):
                I(f"v_xor_b32 v{vGO+4*x+r}, s{sP+r}, v{vGO+4*x+r}")
            I(f"v_xor_b32 v{vGM+4*x+2}, s{sT0}, v{vGM+4*x+2}")
            I(f"v_xor_b32 v{vGM+4*x+3}, s{sT1}, v{vGM+4*x+3}")
            if x == 0:
                I(f"v_or3_b32 v{acc}, v{vGO}, v{vGO+1}, v{vGO+2}")
                I(f"v_or_b32 v{acc}, v{acc}, v{vGO+3}")
                I(f"v_or_b32 v{accm}, v{vGM+2}, v{vGM+3}")
            else:
                I(f"v_or3_b32 v{acc}, v{acc}, v{vGO+4*x}, v{vGO+4*x+1}")
                I(f"v_or3_b32 v{acc}, v{acc}, v{vGO+4*x+2}, v{vGO+4*x+3}")
                I(f"v_or3_b32 v{accm}, v{accm}, v{vGM+4*x+2}, v{vGM+4*x+3}")
        I(f"v_and_b32 v{acc}, v{acc}, v{vT+3}")
        I(f"v_or_b32 v{acc}, v{acc}, v{accm}")
        I(f"v_cmp_ne_u32 vcc, 0, v{acc}")
        I(f"s_add_u32 s{t7}, s{t7}, 1")
        nop(3)
        I(f"s_cbranch_vccz L_c{ns}")
        I(f"s_cmp_lt_u32 s{t7}, 0x40000")
        if g.sleep_poll: I(f"s_sleep {g.sleep_poll}")
        I(f"s_cbranch_scc1 L_g{ns}")
        lab(f"L_c{ns}")
        g.stamp(8)
        vM = vX + 6
        I(f"v_max_f32 v{vM}, v{vA_M}, v{vGM}")
        for x in range(1, nsrc):
            I(f"v_max_f32 v{vM}, v{vM}, v{vGM+4*x}")
        I(f"v_sub_f32 v{vA_M}, v{vA_M}, v{vM}")
        for x in range(nsrc):
            I(f"v_sub_f32 v{vGM+4*x}, v{vGM+4*x}, v{vM}")
        I(f"v_exp_f32 v{vA_M}, v{vA_M}")
        for x in range(nsrc):
            I(f"v_exp_f32 v{vGM+4*x}, v{vGM+4*x}")
        nop(1)
        I(f"v_mul_f32 v{vA_L}, v{vA_L}, v{vA_M}")
        for r in range(4):
            I(f"v_mul_f32 v{vA_O+r}, v{vA_O+r}, v{vA_M}")
        for x in range(nsrc):
            I(f"v_fmac_f32 v{vA_L}, v{vGM+4*x+1}, v{vGM+4*x}")
            for r in range(4):
                I(f"v_fmac_f32 v{vA_O+r}, v{vGO+4*x+r}, v{vGM+4*x}")
        I("s_branch L_store1")
    lab("L_store1")
    I(f"v_rcp_f32 v{vA_L}, v{vA_L}")
    nop(1)
    for r in range(4):
        I(f"v_mul_f32 v{vA_O+r}, v{vA_O+r}, v{vA_L}")
    I(f"v_cvt_pk_bf16_f32 v{vA_O}, v{vA_O}, v{vA_O+1}")
    I(f"v_cvt_pk_bf16_f32 v{vA_O+1}, v{vA_O+2}, v{vA_O+3}")
    I(f"buffer_store_dwordx2 {vr(vA_O,2)}, v{vOO}, {sr(SO,4)}, 0 offen")
    I(f"s_or_b32 s{t0}, s{sJ}, s{sW}")
    I(f"s_cbranch_scc1 L_fin")
    I(f"s_lshl_b32 s{t0}, s{sH}, 5")
    I(f"s_lshl_b32 s{t1}, s{sB}, 2")
    I(f"s_add_u32 s{t0}, s{t0}, s{t1}")
    I(f"s_add_u32 s{t1}, s{sE}, 1")
    I(f"v_mov_b32 v{vX+8}, s{t1}")
    I(f"v_mov_b32 v{vX+9}, 0")
    I(f"s_mov_b64 exec, 1")
    I(f"buffer_store_dword v{vX+8}, v{vX+9}, {sr(SWS,4)}, s{t0} offen sc1")
    I(f"s_mov_b64 exec, -1")
    I("s_branch L_fin")
    lab("L_single")
    nop(4)
    for hq in range(2):
        I(f"v_rcp_f32 v{vX+hq}, v{vLs+4*hq}")
    nop(1)
    for hq in range(2):
        for r in range(4):
            I(f"v_mul_f32 v{vO+4*hq+r}, v{vO+4*hq+r}, v{vX+hq}")
        I(f"v_cvt_pk_bf16_f32 v{vO+4*hq}, v{vO+4*hq}, v{vO+4*hq+1}")
        I(f"v_cvt_pk_bf16_f32 v{vO+4*hq+1}, v{vO+4*hq+2}, v{vO+4*hq+3}")
    I(f"buffer_store_dwordx2 {vr(vO,2)}, v{vOO}, {sr(SO,4)}, 0 offen")
    I(f"v_add_u32 v{vOO}, 4096, v{vOO}")
    I(f"buffer_store_dwordx2 {vr(vO+4,2)}, v{vOO}, {sr(SO,4)}, 0 offen")
    lab("L_fin")
    if pad:
        lab("L_pad")
        I("s_sleep 8")
        I(f"s_memrealtime {sr(t0)}")
        I("s_waitcnt lgkmcnt(0)")
        I(f"s_sub_u32 s{t0}, s{t0}, s100")
        I(f"s_cmp_lt_u32 s{t0}, {pad}")
        I("s_cbranch_scc1 L_pad")
    if g.stamps == "dbg":
        g.stamp(9)
        I(f"s_load_dwordx2 {sr(t0)}, s[0:1], 48")
        I("s_waitcnt lgkmcnt(0)")
        I(f"s_cmp_lg_u32 s{sW}, 0")
        I("s_cbranch_scc1 L_end")
        I(f"s_mov_b64 exec, 1")
        I(f"v_mov_b32 v{vX+12}, 0")
        for n, k in enumerate((0, 2, 3, 4, 5, 6, 7, 9)):
            I(f"v_mov_b32 v{vX+10}, s{STB+2*k}")
            I(f"global_atomic_umax v{vX+12}, v{vX+10}, {sr(t0)} offset:{8*n}")
            I(f"s_not_b32 s{t2}, s{STB+2*k}")
            I(f"v_mov_b32 v{vX+11}, s{t2}")
            I(f"global_atomic_umax v{vX+12}, v{vX+11}, {sr(t0)} offset:{8*n+4}")
            nop(2)
    elif g.stamps:
        g.stamp(9)
        I("s_waitcnt lgkmcnt(0)")
        I(f"s_lshl_b32 s{t0}, s{sW}, 8")
        I(f"s_add_u32 s{t0}, s{t0}, s2")
        I(f"s_mul_i32 s{t0}, s{t0}, {g.nst*8}")
        I(f"s_add_u32 s{t0}, s{t0}, {STAMP_OFF}")
        I(f"s_add_u32 s{sWS}, s{sWS}, s{t0}")
        I(f"s_addc_u32 s{sWS+1}, s{sWS+1}, 0")
        I(f"v_mov_b32 v{vX+12}, 0")
        for k in range(g.nst):
            I(f"v_mov_b32 v{vX+10}, s{STB+2*k}")
            I(f"v_mov_b32 v{vX+11}, s{STB+2*k+1}")
            I(f"global_store_dwordx2 v{vX+12}, {vr(vX+10,2)}, {sr(sWS)} offset:{8*k}")
            nop(2)
    lab("L_end")
    I("s_endpgm")
    A('.section .rodata,"a"')
    A(".p2align 6")
    A(f".amdhsa_kernel {NAME}_kernel")
    A("  .amdhsa_next_free_vgpr 256")
    A("  .amdhsa_next_free_sgpr 102")
    A("  .amdhsa_accum_offset 256")
    A("  .amdhsa_group_segment_fixed_size 0")
    A("  .amdhsa_kernarg_size 64")
    A("  .amdhsa_user_sgpr_count 2")
    A("  .amdhsa_user_sgpr_kernarg_segment_ptr 1")
    A("  .amdhsa_system_sgpr_workgroup_id_x 1")
    A(".end_amdhsa_kernel")
    return "\n".join(x for x in g.L if x is not None) + "\n"

if __name__ == "__main__":
    open("k1.s", "w").write(gen())
    open("k1_st.s", "w").write(gen(stamps=True))
    open("k1_dbg.s", "w").write(gen(stamps="dbg"))
    open("k1_nont.s", "w").write(gen(nt=False))
    open("k1_pad50.s", "w").write(gen(pad=5000))
    open("k1_pad100.s", "w").write(gen(pad=10000))
    print("ok")
```
